```python
import torch

def _softmax(x, axis=-1):
    return torch.softmax(x, dim=axis)
def _gelu(x):
    return torch.nn.functional.gelu(x, approximate="tanh")
def _silu(x):
    return torch.nn.functional.silu(x)
def _sigmoid(x):
    return torch.sigmoid(x)
def _layernorm(x, axis=-1, eps=1e-5):
    m = x.mean(dim=axis, keepdim=True)
    v = x.var(dim=axis, keepdim=True, unbiased=False)
    return (x - m) / torch.sqrt(v + eps)
def _scatter_add(tgt, idx, src, axis=0):
    return tgt.clone().index_add_(axis, idx, src)
def _segment_sum(src, seg, n):
    out = torch.zeros((n,) + src.shape[1:], dtype=src.dtype)
    return out.index_add_(0, seg, src)
def _pad(x, pw):
    flat = tuple(v for pair in reversed(pw) for v in pair)
    return torch.nn.functional.pad(x, flat)

kernel_name = 'gated_mix__linear_attn_block__sliding_local_dilated__prompt'

def setup_inputs():

    _w = (lambda a: (lambda t: t.to(torch.bfloat16) if t.is_floating_point() else t)(torch.as_tensor(a)))
    def _A_setup():
        B, S, D = 1, 2048, 512
        return {
            "x": _w((lambda *s: torch.randn(*s, dtype=torch.bfloat16) * 0.05)(B, S, D)),
            "wqkv": _w((lambda *s: torch.randn(*s, dtype=torch.bfloat16) * 1.6)(D, 3 * D)),
            "wo": _w((lambda *s: torch.randn(*s, dtype=torch.bfloat16) * 0.4)(D, D)),
        }
    _A_in = _A_setup()

    def _B_setup():
        B, S, D = 1, 2048, 512
        return {
            "x": _w((lambda *s: torch.randn(*s, dtype=torch.bfloat16) * 0.05)(B, S, D)),
            "wqkv": _w((lambda *s: torch.randn(*s, dtype=torch.bfloat16) * 0.8)(D, 3 * D)),
            "wo": _w((lambda *s: torch.randn(*s, dtype=torch.bfloat16) * 0.05)(D, D)),
        }
    _B_in = _B_setup()

    return {
        "A_x": _A_in["x"],
        "A_wqkv": _A_in["wqkv"],
        "A_wo": _A_in["wo"],
        "B_x": _B_in["x"],
        "B_wqkv": _B_in["wqkv"],
        "B_wo": _B_in["wo"],
        "gate_w": _w((lambda *s: torch.randn(*s, dtype=torch.bfloat16) * 0.05)(512) * 16.0),
    }

def reference(A_x, A_wqkv, A_wo, B_x, B_wqkv, B_wo, gate_w):
    def _A_ref(x, wqkv, wo):
        B, S, D = x.shape
        H = 32; Dh = D // H
        qkv = (lambda x, *d: x.permute(*d))((x @ wqkv).reshape(B, S, 3, H, Dh), 2, 0, 3, 1, 4)
        q, k, v = qkv[0], qkv[1], qkv[2]
        phi = lambda t: torch.where(t > 0, t + 1, torch.exp(t)) + 1e-6
        pq, pk = phi(q), phi(k)
        kv = torch.einsum("bhsd,bhse->bhde", pk, v)
        z = torch.einsum("bhsd->bhd", pk)
        num = torch.einsum("bhqd,bhde->bhqe", pq, kv)
        den = torch.einsum("bhqd,bhd->bhq", pq, z)[..., None] + 1e-6
        o = num / den
        return (lambda x, *d: x.permute(*d))(o, 0, 2, 1, 3).reshape(B, S, D) @ wo

    def _B_ref(x, wqkv, wo):
        B, S, D = x.shape
        H = 32; Dh = D // H
        W, dil = 8, 2
        qkv = (lambda x, *d: x.permute(*d))((x @ wqkv).reshape(B, S, 3, H, Dh), 2, 0, 3, 1, 4)
        q, k, v = qkv[0], qkv[1], qkv[2]
        scale = Dh ** -0.5
        pos = torch.arange(S)
        off = torch.arange(W) * dil
        idx = pos[:, None] - off[None, :]
        mask = idx >= 0
        idx_c = torch.where(mask, idx, 0).reshape(-1)
        kg = k[:, :, idx_c, :].reshape(B, H, S, W, Dh)
        vg = v[:, :, idx_c, :].reshape(B, H, S, W, Dh)
        logits = torch.einsum("bhsd,bhswd->bhsw", q, kg) * scale
        logits = torch.where(mask[None, None, :, :], logits, -1e9)
        attn = _softmax(logits, axis=-1)
        o = torch.einsum("bhsw,bhswd->bhsd", attn, vg)
        return (lambda x, *d: x.permute(*d))(o, 0, 2, 1, 3).reshape(B, S, D) @ wo

    x = A_x
    g = _sigmoid((x * gate_w).sum(-1, keepdims=True))
    a = _A_ref(x, A_wqkv, A_wo)
    b = _B_ref(x, B_wqkv, B_wo)
    return g * a + (1 - g) * b
```

```python
import re

REG_RE = re.compile(r"^(-|\|)?(abs\()?([vas])(\d+|\[(\d+):(\d+)\])\)?\|?$")

def parse_reg(tok):
    t = tok.strip()
    if t in ("vcc", "exec", "m0", "scc", "vcc_lo", "vcc_hi", "exec_lo", "exec_hi"):
        return {("x", t.replace("_lo", "").replace("_hi", ""))}
    t2 = t
    t2 = t2.lstrip("-")
    if t2.startswith("abs(") and t2.endswith(")"):
        t2 = t2[4:-1]
    if t2.startswith("|") and t2.endswith("|"):
        t2 = t2[1:-1]
    m = re.match(r"^([vas])(\d+)$", t2)
    if m:
        return {(m.group(1), int(m.group(2)))}
    m = re.match(r"^([vas])\[(\d+):(\d+)\]$", t2)
    if m:
        return {(m.group(1), i) for i in range(int(m.group(2)), int(m.group(3)) + 1)}
    return set()

TRANS = ("v_exp_f32", "v_log_f32", "v_rcp_f32", "v_rsq_f32", "v_sqrt_f32", "v_sin_f32", "v_cos_f32", "v_rcp_iflag_f32")

class Ins:
    __slots__ = ("text", "op", "ops", "kind", "w", "r", "label", "target", "passes", "mA", "mB", "mC", "isdpp", "lds_dma", "storedata")
    def __init__(self, text):
        self.text = text
        self.label = None; self.target = None
        self.w = set(); self.r = set()
        self.passes = 0; self.mA = self.mB = self.mC = set()
        self.isdpp = False; self.lds_dma = False; self.storedata = set()
        s = text.split(";")[0].strip()
        if s.endswith(":"):
            self.kind = "label"; self.label = s[:-1]; self.op = None; return
        if not s or s.startswith("."):
            self.kind = "none"; self.op = None; return
        parts = s.split(None, 1)
        op = parts[0]; self.op = op
        rest = parts[1] if len(parts) > 1 else ""
        toks = []; cur = ""; depth = 0
        for ch in rest:
            if ch == "[": depth += 1
            if ch == "]": depth -= 1
            if ch == "," and depth == 0:
                toks.append(cur.strip()); cur = ""
            else:
                cur += ch
        if cur.strip(): toks.append(cur.strip())
        mods = []
        if toks:
            lt = toks[-1].split()
            toks[-1] = lt[0]; mods = lt[1:]
        self.ops = toks
        R = [parse_reg(t) for t in toks]
        base = op.replace("_e32", "").replace("_e64", "").replace("_dpp", "").replace("_sdwa", "")
        if op.startswith("v_mfma"):
            self.kind = "mfma"
            self.w = R[0]; self.mA = R[1]; self.mB = R[2]; self.mC = R[3]
            self.r = R[1] | R[2] | R[3]
            self.passes = 8 if "32x32" in op else 4
        elif op.startswith("v_"):
            self.kind = "valu"
            if "dpp" in op or any(m.startswith(("quad_perm", "row_", "wave_")) for m in mods):
                self.isdpp = True
            if base.startswith("v_cmp"):
                self.w = R[0]; self.r = set().union(*R[1:])
            elif base in ("v_readfirstlane_b32", "v_readlane_b32"):
                self.w = R[0]; self.r = set().union(*R[1:])
            elif base.startswith("v_permlane") and "swap" in base:
                self.w = R[0] | R[1]; self.r = R[0] | R[1]
            elif base in ("v_add_co_u32", "v_sub_co_u32", "v_addc_co_u32", "v_subb_co_u32"):
                self.w = R[0] | R[1]; self.r = set().union(*R[2:])
            else:
                self.w = R[0]; self.r = set().union(*R[1:]) if len(R) > 1 else set()
                if base in ("v_fmac_f32", "v_dot2c_f32_bf16", "v_pk_fmac_f16", "v_writelane_b32") or base.startswith("v_mac"):
                    self.r |= R[0]
                if self.isdpp: self.r |= R[0]
                if base == "v_cndmask_b32" and len(R) == 3:
                    self.r |= {("x", "vcc")}
            if base in TRANS: self.kind = "trans"
        elif op.startswith("ds_"):
            self.kind = "ds"
            if op.startswith(("ds_read", "ds_bpermute", "ds_permute", "ds_swizzle")):
                self.w = R[0]; self.r = set().union(*R[1:])
            else:
                self.r = set().union(*R)
        elif op.startswith("buffer_") or op.startswith("global_"):
            self.kind = "vmem"
            allm = mods + toks
            if op in ("buffer_inv", "buffer_wbl2"):
                pass
            elif op.startswith("buffer_load"):
                if "lds" in mods:
                    self.lds_dma = True
                    self.r = set().union(*R) | {("x", "m0")}
                else:
                    self.w = R[0]; self.r = set().union(*R[1:])
            elif op.startswith("global_load_lds"):
                self.lds_dma = True
                self.r = set().union(*R) | {("x", "m0")}
            elif op.startswith("global_load"):
                self.w = R[0]; self.r = set().union(*R[1:])
            elif op.startswith("buffer_store"):
                self.r = set().union(*R)
                if "x4" in op or "x3" in op: self.storedata = R[0]
            elif op.startswith("global_store"):
                self.r = set().union(*R)
                if "x4" in op or "x3" in op: self.storedata = R[1]
            elif "atomic" in op:
                self.r = set().union(*R)
                if "sc0" in mods: self.w = R[0]
        elif op.startswith("s_"):
            self.kind = "salu"
            if op.startswith(("s_cbranch", "s_branch")):
                self.kind = "branch"; self.target = toks[0]
                if "vcc" in op: self.r = {("x", "vcc")}
                if "exec" in op: self.r = {("x", "exec")}
            elif op == "s_nop":
                self.kind = "nop"
            elif op.startswith(("s_waitcnt", "s_barrier", "s_endpgm", "s_sleep", "s_setprio")):
                pass
            elif op.startswith("s_cmp"):
                self.r = set().union(*R)
            elif op.startswith(("s_load", "s_memtime", "s_memrealtime", "s_getreg")):
                self.w = R[0]; self.r = set().union(*R[1:]) if len(R) > 1 else set()
            else:
                self.w = R[0] if R else set(); self.r = set().union(*R[1:]) if len(R) > 1 else set()
                if "saveexec" in op:
                    self.w |= {("x", "exec")}; self.r |= {("x", "exec")}
        else:
            raise ValueError("unknown op: " + text)
    def states(self):
        if self.kind in ("label", "none"): return 0
        if self.kind == "nop":
            return int(self.ops[0], 0) + 1
        return 1

def isv(regs): return {x for x in regs if x[0] in ("v", "a")}
def iss(regs): return {x for x in regs if x[0] == "s" or x == ("x", "vcc")}

def required(prod, cons):
    need = 0
    pk, ck = prod.kind, cons.kind
    pvalu = pk in ("valu", "trans")
    cvalu = ck in ("valu", "trans")
    if pvalu:
        pw = isv(prod.w)
        if ck == "mfma" and pw & cons.r: need = max(need, 2)
        if cvalu and cons.op.startswith("v_permlane") and pw & cons.r: need = max(need, 2)
        if cvalu and cons.isdpp and pw & cons.r: need = max(need, 2)
        if cvalu and cons.op.startswith(("v_readlane", "v_readfirstlane")) and pw & cons.r: need = max(need, 1)
        if pk == "trans" and cvalu and ck != "trans" and pw & cons.r: need = max(need, 1)
        if pk == "trans" and ck == "trans" and pw & cons.r: need = max(need, 1)
        sw = iss(prod.w)
        if sw:
            if ck == "vmem" and sw & cons.r: need = max(need, 5)
            if cvalu and sw & cons.r: need = max(need, 2)
            if cvalu and cons.op.startswith(("v_readlane", "v_writelane")) and sw & cons.r: need = max(need, 4)
            if ck in ("salu", "branch") and sw & cons.r: need = max(need, 4)
        if ("x", "exec") in prod.w:
            need = max(need, 5 if (cvalu or ck == "mfma") else 0)
    if pk == "salu":
        if ("x", "m0") in prod.w and cons.lds_dma: need = max(need, 1)
        if ("x", "exec") in prod.w and ck == "mfma": need = max(need, 1)
    if pk == "mfma":
        P = prod.passes
        t_c = {4: 6, 8: 10}[P]; t_ab = {4: 8, 8: 12}[P]; t_war = {4: 3, 8: 7}[P]
        if ck == "mfma":
            if prod.w & cons.mC:
                if not (prod.w == cons.mC and prod.passes == cons.passes and prod.op == cons.op): need = max(need, t_c)
            if prod.w & (cons.mA | cons.mB): need = max(need, t_ab)
            if prod.w & cons.w and not (prod.w & cons.mC): need = max(need, t_c)
        elif cvalu or ck in ("vmem", "ds"):
            if prod.w & (cons.r | cons.w): need = max(need, t_ab)
            if cvalu and prod.mC & cons.w: need = max(need, t_war)
    if pk == "vmem" and prod.storedata:
        if cvalu and prod.storedata & cons.w: need = max(need, 2)
        elif prod.storedata & cons.w: need = max(need, 1)
    return need

MAXD = 13
def _worst(cur, i, preds):
    c = cur[i]
    worst = 0
    stack = [(p, 0) for p in preds(i)]
    seen = {}
    while stack:
        j, d = stack.pop()
        if d >= MAXD: continue
        if j in seen and seen[j] <= d: continue
        seen[j] = d
        p = cur[j]
        if p.kind not in ("label", "none", "nop"):
            need = required(p, c)
            if need > d: worst = max(worst, need - d)
        for q in preds(j):
            stack.append((q, d + p.states()))
    return worst

def fix_hazards(lines, verbose=False):
    ins = [Ins(l) for l in lines]
    total = 0
    for it in range(10):
        cur = []
        srcs = {}
        def preds(i):
            p = []
            if i > 0:
                q = cur[i - 1]
                if not (q.kind == "branch" and q.op == "s_branch") and not (q.op == "s_endpgm"):
                    p.append(i - 1)
            if cur[i].kind == "label":
                p += srcs.get(cur[i].label, [])
            return p
        n_ins = 0
        for c in ins:
            cur.append(c)
            i = len(cur) - 1
            if c.kind == "branch":
                srcs.setdefault(c.target, []).append(i)
            if c.kind in ("label", "none", "nop"): continue
            w = _worst(cur, i, preds)
            if w:
                cur.pop()
                if c.kind == "branch": srcs[c.target].pop()
                n = w
                while n > 0:
                    k = min(n, 16); cur.append(Ins(f"s_nop {k-1}")); n -= k
                cur.append(c)
                if c.kind == "branch": srcs[c.target].append(len(cur) - 1)
                n_ins += 1
                if verbose: print("hazard pad", w, "before", c.text)
        bad = [i for i, c in enumerate(cur) if c.kind not in ("label", "none", "nop") and _worst(cur, i, preds)]
        total += n_ins
        if not bad:
            return [x.text for x in cur], total
        new = []
        for i, c in enumerate(cur):
            if i in bad:
                w = _worst(cur, i, preds)
                new.append(Ins(f"s_nop {min(w,16)-1}"))
                total += 1
            new.append(c)
        ins = new
    raise RuntimeError("hazard fix did not converge")

class Prog:
    def __init__(self):
        self.lines = []
        self.n = 0
    def __call__(self, s):
        for l in s.strip("\n").split("\n"):
            l = l.strip()
            if l: self.lines.append(l)
    def label(self, name): self.lines.append(name + ":")
    def newlabel(self, p="L"):
        self.n += 1
        return f"{p}_{self.n}"
    def text(self, verbose=False):
        lines = self.lines
        tot = 0
        while True:
            try:
                lines, t = fix_hazards(lines, verbose)
                tot += t
                break
            except RuntimeError:
                raise
        return "\n".join(("" if l.endswith(":") else "    ") + l for l in lines) + "\n", tot

def vr(base, n=1):
    return f"v{base}" if n == 1 else f"v[{base}:{base+n-1}]"
def ar(base, n=1):
    return f"a{base}" if n == 1 else f"a[{base}:{base+n-1}]"
def sr(base, n=1):
    return f"s{base}" if n == 1 else f"s[{base}:{base+n-1}]"
```

```python
import sys
from fw import *

OFF_E = 0
OFF_G = 4096
OFF_KV = 65536
OFF_O = 1 << 20
WS_BYTES = 268435456

SLOT = 34816
XH_OFF = 16384
W_OFF = 18432
MISC = 4 * SLOT
GATE_L = MISC
RED = MISC + 1024
LDS_K1 = 163840
SPIN_LIMIT = 1 << 20

DEBUG_STAMPS = False

def mfma32(d, a, b, c):
    return f"v_mfma_f32_16x16x32_bf16 {d}, {a}, {b}, {c}"
def mfma16(d, a, b, c):
    return f"v_mfma_f32_16x16x16_bf16 {d}, {a}, {b}, {c}"

V_LANE = 1
V_X0, V_X1, V_W, V_H = 2, 3, 4, 5
V_XR = [[6, 7], [8, 9]]
V_WR = [[10, 11], [12, 13]]
V_XH = [[14, 15], [16, 17]]
V_WH = [18, 19]
V_C0, V_C1, V_C2, V_C3 = 20, 21, 22, 23
V_T = 24
V_WF = [28, 44]
V_XHF = [60, 64]
V_WHF = [68, 72]
V_AK = 76; V_AV = 92; V_AQ = 108; V_AH = 124
def acc(base, b, j): return base + (b * 2 + j) * 4
def xfr(t, b): return (t * 2 + b) * 4

S_X = 8; S_W = 12; S_WS = 16; S_GATE = 20
S_WAVE = 24; S_RB = 25; S_HG = 26; S_ROT = 27
S_XB = 28; S_WB = 29; S_HB = 30
S_MX = 31; S_MW = 32; S_MH = 33
S_T0 = 34; S_T1 = 35; S_T2 = 36; S_T3 = 37
S_RG = 38; S_HP = 39; S_TAG = 40; S_BR = 41
S_QB = 42
S_SAVE = 44
S_M0 = 46; S_M1 = 48; S_M2 = 50
S_CNT = 52

def k1_prologue(p):
    p(f"""
    s_cmp_ge_u32 s2, 256
    s_cbranch_scc1 K1_END
    s_load_dwordx2 s[4:5], s[0:1], 0
    s_load_dwordx2 s[6:7], s[0:1], 8
    s_load_dwordx2 s[54:55], s[0:1], 32
    s_load_dwordx2 s[56:57], s[0:1], 48
    s_load_dwordx2 s[58:59], s[0:1], 72
    v_lshrrev_b32 v{V_T}, 6, v0
    v_and_b32 v{V_LANE}, 63, v0
    v_readfirstlane_b32 s{S_WAVE}, v{V_T}
    s_and_b32 s{S_T0}, s2, 7
    s_lshr_b32 s{S_T1}, s2, 3
    s_and_b32 s{S_RB}, s{S_T0}, 1
    s_lshl_b32 s{S_RB}, s{S_RB}, 3
    s_and_b32 s{S_T2}, s{S_T1}, 7
    s_add_u32 s{S_RB}, s{S_RB}, s{S_T2}
    s_lshr_b32 s{S_T3}, s{S_T1}, 3
    s_lshl_b32 s{S_ROT}, s{S_T3}, 1
    s_add_u32 s{S_ROT}, s{S_ROT}, s{S_T2}
    s_and_b32 s{S_ROT}, s{S_ROT}, 7
    s_lshr_b32 s{S_T0}, s{S_T0}, 1
    s_lshl_b32 s{S_T0}, s{S_T0}, 2
    s_add_u32 s{S_T0}, s{S_T0}, s{S_T3}
    s_lshr_b32 s{S_BR}, s{S_T0}, 3
    s_and_b32 s{S_HG}, s{S_T0}, 7
    s_and_b32 s{S_RG}, s{S_WAVE}, 3
    s_lshr_b32 s{S_HP}, s{S_WAVE}, 2
    """)
    L, T = V_LANE, V_T
    p(f"""
    v_lshrrev_b32 v{T}, 3, v{L}
    v_lshrrev_b32 v{T+1}, 4, v{L}
    v_and_b32 v{T+2}, 7, v{L}
    v_xor_b32 v{T+3}, v{T+2}, v{T+1}
    v_lshlrev_b32 v{T+3}, 4, v{T+3}
    v_lshl_add_u32 v{V_X0}, v{T}, 10, v{T+3}
    v_xor_b32 v{V_X1}, 64, v{V_X0}
    v_add_u32 v{V_X1}, {8192-1024}, v{V_X1}
    """)
    p(f"""
    s_and_b32 s{S_T0}, s{S_WAVE}, 1
    s_lshl_b32 s{S_T0}, s{S_T0}, 2
    v_and_b32 v{T+1}, 1, v{T+1}
    v_lshlrev_b32 v{T+1}, 1, v{T+1}
    v_or_b32 v{T+1}, s{S_T0}, v{T+1}
    v_xor_b32 v{T+3}, v{T+2}, v{T+1}
    v_lshlrev_b32 v{T+3}, 4, v{T+3}
    v_mul_u32_u24 v{V_W}, 3072, v{T}
    v_add_u32 v{V_W}, v{V_W}, v{T+3}
    """)
    p(f"""
    v_xor_b32 v{T+3}, s{S_WAVE}, v{T+2}
    v_lshlrev_b32 v{T+3}, 4, v{T+3}
    v_lshl_add_u32 v{V_H}, v{T}, 10, v{T+3}
    """)
    p(f"""
    s_lshl_b32 s{S_XB}, s{S_RB}, 17
    s_lshl_b32 s{S_T0}, s{S_WAVE}, 14
    s_add_u32 s{S_XB}, s{S_XB}, s{S_T0}
    s_mul_i32 s{S_QB}, s{S_WAVE}, {8*3072}
    s_lshl_b32 s{S_T0}, s{S_HG}, 7
    s_add_u32 s{S_QB}, s{S_QB}, s{S_T0}
    s_add_u32 s{S_WB}, s{S_QB}, 1024
    s_lshl_b32 s{S_HB}, s{S_RB}, 7
    s_sub_u32 s{S_HB}, s{S_HB}, 16
    s_max_i32 s{S_HB}, s{S_HB}, 0
    s_lshl_b32 s{S_T0}, s{S_WAVE}, 1
    s_add_u32 s{S_HB}, s{S_HB}, s{S_T0}
    s_lshl_b32 s{S_HB}, s{S_HB}, 10
    s_lshl_b32 s{S_MX}, s{S_WAVE}, 11
    s_add_u32 s{S_MW}, s{S_MX}, {W_OFF}
    s_lshl_b32 s{S_MH}, s{S_WAVE}, 8
    s_add_u32 s{S_MH}, s{S_MH}, {XH_OFF}
    s_cmp_eq_u32 s{S_BR}, 0
    s_waitcnt lgkmcnt(0)
    s_cselect_b32 s{S_W}, s6, s54
    s_cselect_b32 s{S_W+1}, s7, s55
    s_mov_b32 s{S_W+2}, {512*3072}
    s_mov_b32 s{S_W+3}, 0x20000
    s_mov_b32 s{S_X}, s4
    s_mov_b32 s{S_X+1}, s5
    s_mov_b32 s{S_X+2}, {2048*1024}
    s_mov_b32 s{S_X+3}, 0x20000
    """)

def dma_slice(p, q, isB):
    so = (q % 4) * SLOT
    p(f"""
    s_add_u32 s{S_T0}, s{S_ROT}, {q}
    s_and_b32 s{S_T0}, s{S_T0}, 7
    s_lshl_b32 s{S_T1}, s{S_T0}, 7
    s_mul_i32 s{S_T2}, s{S_T0}, {64*3072}
    s_add_u32 s{S_T3}, s{S_T1}, s{S_XB}
    s_add_u32 m0, s{S_MX}, {so}
    s_add_u32 s{S_T2}, s{S_T2}, s{S_WB}
    buffer_load_dwordx4 v{V_X0}, s[{S_X}:{S_X+3}], s{S_T3} offen lds
    buffer_load_dwordx4 v{V_X1}, s[{S_X}:{S_X+3}], s{S_T3} offen offset:1024 lds
    s_add_u32 m0, s{S_MW}, {so}
    s_nop 0
    buffer_load_dwordx4 v{V_W}, s[{S_W}:{S_W+3}], s{S_T2} offen lds
    buffer_load_dwordx4 v{V_W}, s[{S_W}:{S_W+3}], s{S_T2} offen offset:1024 lds
    """)
    if isB:
        p(f"""
        s_add_u32 s{S_T1}, s{S_T1}, s{S_HB}
        s_add_u32 m0, s{S_MH}, {so}
        s_mov_b64 exec, 0xffff
        buffer_load_dwordx4 v{V_H}, s[{S_X}:{S_X+3}], s{S_T1} offen lds
        s_mov_b64 exec, -1
        """)

def dma_wq(p, half):
    for pp in range(4 * half, 4 * half + 4):
        ldso = half * SLOT + ((pp >> 1) & 1) * 16384 + (pp & 1) * 1024
        p(f"""
        s_add_u32 s{S_T0}, s{S_ROT}, {pp}
        s_and_b32 s{S_T0}, s{S_T0}, 7
        s_mul_i32 s{S_T2}, s{S_T0}, {64*3072}
        s_add_u32 m0, s{S_MX}, {ldso}
        s_add_u32 s{S_T2}, s{S_T2}, s{S_QB}
        buffer_load_dwordx4 v{V_W}, s[{S_W}:{S_W+3}], s{S_T2} offen lds
        """)

def read_addr_setup(p, isB):
    L, T = V_LANE, V_T
    p(f"""
    v_and_b32 v{T}, 15, v{L}
    v_lshrrev_b32 v{T+1}, 4, v{L}
    v_lshrrev_b32 v{T+2}, 1, v{T}
    v_xor_b32 v{T+2}, v{T+2}, v{T+1}
    v_lshlrev_b32 v{T+2}, 4, v{T+2}
    v_lshl_add_u32 v{T+2}, v{T}, 7, v{T+2}
    s_lshl_b32 s{S_T0}, s{S_RG}, 12
    v_add_u32 v{V_XR[0][0]}, s{S_T0}, v{T+2}
    v_xor_b32 v{V_XR[0][1]}, 64, v{V_XR[0][0]}
    v_add_u32 v{V_XR[1][0]}, {2*SLOT}, v{V_XR[0][0]}
    v_add_u32 v{V_XR[1][1]}, {2*SLOT}, v{V_XR[0][1]}
    """)
    if isB:
        p(f"""
        v_add_u32 v{V_XH[0][0]}, {XH_OFF}, v{T+2}
        v_xor_b32 v{V_XH[0][1]}, 64, v{V_XH[0][0]}
        v_add_u32 v{V_XH[1][0]}, {2*SLOT}, v{V_XH[0][0]}
        v_add_u32 v{V_XH[1][1]}, {2*SLOT}, v{V_XH[0][1]}
        """)
    p(f"""
    v_lshrrev_b32 v{T+2}, 2, v{T}
    v_lshrrev_b32 v{T+3}, 1, v{T+2}
    v_and_b32 v{V_C0}, 1, v{T+1}
    v_lshl_or_b32 v{T+3}, v{V_C0}, 1, v{T+3}
    s_lshl_b32 s{S_T0}, s{S_HP}, 1
    v_xor_b32 v{T+3}, s{S_T0}, v{T+3}
    v_lshlrev_b32 v{T+3}, 5, v{T+3}
    v_lshl_add_u32 v{T+3}, v{T+2}, 7, v{T+3}
    v_lshl_add_u32 v{T+3}, v{T+1}, 11, v{T+3}
    v_and_b32 v{V_C0}, 3, v{L}
    v_lshl_add_u32 v{V_WR[0][0]}, v{V_C0}, 3, v{T+3}
    v_xor_b32 v{V_WR[0][1]}, 32, v{V_WR[0][0]}
    v_add_u32 v{V_WR[1][0]}, {2*SLOT}, v{V_WR[0][0]}
    v_add_u32 v{V_WR[1][1]}, {2*SLOT}, v{V_WR[0][1]}
    """)
    if isB:
        p(f"""
        s_and_b32 s{S_T0}, s{S_RG}, 1
        s_lshl_b32 s{S_T0}, s{S_T0}, 5
        s_lshr_b32 s{S_T1}, s{S_RG}, 1
        s_lshl_b32 s{S_T1}, s{S_T1}, 10
        v_xor_b32 v{V_WH[0]}, s{S_T0}, v{V_WR[0][0]}
        v_add_u32 v{V_WH[0]}, s{S_T1}, v{V_WH[0]}
        v_add_u32 v{V_WH[1]}, {2*SLOT}, v{V_WH[0]}
        """)

def s1_reads(p, pos, ks, st, isB):
    slot = pos % 4; hi = slot >> 1; so = (slot & 1) * SLOT
    t = 2 * pos + ks
    n = 0
    for b in range(2):
        p(f"ds_read_b128 {ar(xfr(t, b), 4)}, v{V_XR[hi][ks]} offset:{so + b * 2048}"); n += 1
    for m in range(2):
        for j in range(2):
            f = V_WF[st] + (m * 2 + j) * 4
            o = so + W_OFF + ks * 8192 + m * 1024
            p(f"ds_read_b64_tr_b16 {vr(f, 2)}, v{V_WR[hi][j]} offset:{o}")
            p(f"ds_read_b64_tr_b16 {vr(f+2, 2)}, v{V_WR[hi][j]} offset:{o + 512}"); n += 2
    if isB:
        p(f"ds_read_b128 {vr(V_XHF[st], 4)}, v{V_XH[hi][ks]} offset:{so}")
        o = so + W_OFF + ks * 8192
        p(f"ds_read_b64_tr_b16 {vr(V_WHF[st], 2)}, v{V_WH[hi]} offset:{o}")
        p(f"ds_read_b64_tr_b16 {vr(V_WHF[st]+2, 2)}, v{V_WH[hi]} offset:{o + 512}"); n += 3
    return n

def s1_mfmas(p, t, st, isB):
    first = (t == 0)
    for m in range(2):
        for j in range(2):
            for b in range(2):
                d = acc(V_AK if m == 0 else V_AV, b, j)
                w = vr(V_WF[st] + (m * 2 + j) * 4, 4)
                x = ar(xfr(t, b), 4)
                c = "0" if first else vr(d, 4)
                if isB and m == 0:
                    p(mfma32(vr(d, 4), w, x, c))
                else:
                    p(mfma32(vr(d, 4), x, w, c))
    if isB:
        c = "0" if first else vr(V_AH, 4)
        p(mfma32(vr(V_AH, 4), vr(V_XHF[st], 4), vr(V_WHF[st], 4), c))

def stage1(p, isB, mid_hook=None):
    nper = 5 if isB else 4
    nrd = 13 if isB else 10
    for q in range(3):
        dma_slice(p, q, isB)
    read_addr_setup(p, isB)
    if mid_hook: mid_hook(p)
    groups = [("s", 0, nper), ("s", 1, nper), ("s", 2, nper)]
    def wait_for(idx_name):
        k = [i for i, g in enumerate(groups) if (g[0], g[1]) == idx_name][0]
        return sum(g[2] for g in groups[k + 1:])
    for pos in range(8):
        n = wait_for(("s", pos))
        if pos == 0:
            p(f"s_waitcnt vmcnt({n})")
        else:
            p(f"s_waitcnt vmcnt({n}) lgkmcnt(0)")
        p("s_barrier")
        s1_reads(p, pos, 0, 0, isB)
        q = pos + 3
        if q < 8:
            dma_slice(p, q, isB); groups.append(("s", q, nper))
        elif q == 8:
            dma_wq(p, 0); groups.append(("q", 0, 4))
        elif q == 9:
            dma_wq(p, 1); groups.append(("q", 1, 4))
        if pos > 0:
            s1_mfmas(p, 2 * pos - 1, 1, isB)
        s1_reads(p, pos, 1, 1, isB)
        p(f"s_waitcnt lgkmcnt({nrd})")
        s1_mfmas(p, 2 * pos, 0, isB)
    p("s_waitcnt lgkmcnt(0)")
    s1_mfmas(p, 15, 1, isB)

def s2_reads(p, t, st):
    pos, ks = t >> 1, t & 1
    half = pos >> 2
    o = half * SLOT + ((pos >> 1) & 1) * 16384 + (pos & 1) * 1024 + ks * 8192
    for j in range(2):
        f = V_WF[0] + st * 8 + j * 4
        p(f"ds_read_b64_tr_b16 {vr(f, 2)}, v{V_WR[0][j]} offset:{o}")
        p(f"ds_read_b64_tr_b16 {vr(f+2, 2)}, v{V_WR[0][j]} offset:{o + 512}")

def s2_mfmas(p, t, st):
    for j in range(2):
        for b in range(2):
            d = acc(V_AQ, b, j)
            w = vr(V_WF[0] + st * 8 + j * 4, 4)
            c = "0" if t == 0 else vr(d, 4)
            p(mfma32(vr(d, 4), w, ar(xfr(t, b), 4), c))

def stage2(p, extra_vm=0):
    p(f"s_waitcnt vmcnt({4 + extra_vm}) lgkmcnt(0)")
    p("s_barrier")
    s2_reads(p, 0, 0)
    for t in range(16):
        if t == 7:
            p(f"s_waitcnt vmcnt({extra_vm})")
            p("s_barrier")
        if t + 1 < 16:
            s2_reads(p, t + 1, (t + 1) & 1)
            p("s_waitcnt lgkmcnt(4)")
        else:
            p("s_waitcnt lgkmcnt(0)")
        s2_mfmas(p, t, t & 1)

def phi(p, src, dst, tmp, tmp2):
    p(f"""
    v_mul_f32 v{tmp}, v{src}, v{V_C0}
    v_exp_f32_e64 v{tmp}, v{tmp} clamp
    v_add_f32_e64 v{tmp2}, v{src}, abs(v{src})
    v_add_f32 v{tmp}, v{tmp}, v{V_C1}
    v_fma_f32 v{dst}, v{tmp2}, 0.5, v{tmp}
    """)

def ws_srd(p):
    p(f"""
    s_mov_b32 s{S_WS}, s58
    s_mov_b32 s{S_WS+1}, s59
    s_mov_b32 s{S_WS+2}, {WS_BYTES}
    s_mov_b32 s{S_WS+3}, 0x20000
    """)

def k1_A(p):
    L = V_LANE
    def hook(p):
        pass
    ws_srd(p)
    p(f"""
    s_mov_b32 s{S_GATE}, s56
    s_mov_b32 s{S_GATE+1}, s57
    s_mov_b32 s{S_GATE+2}, 1024
    s_mov_b32 s{S_GATE+3}, 0x20000
    """)
    p(f"""
    s_lshl_b32 s{S_T0}, s{S_HG}, 7
    v_mov_b32 v{V_C3}, s{S_T0}
    buffer_load_dword v{V_C2}, v{V_C3}, s[{S_WS}:{S_WS+3}], 0 offen offset:{OFF_E} sc1
    s_lshl_b32 s{S_T0}, s{S_ROT}, 3
    v_add_u32 v{V_C3}, s{S_T0}, v{L}
    v_and_b32 v{V_C3}, 63, v{V_C3}
    v_lshlrev_b32 v{V_C3}, 4, v{V_C3}
    s_mov_b32 m0, {GATE_L}
    s_nop 0
    buffer_load_dwordx4 v{V_C3}, s[{S_GATE}:{S_GATE+3}], 0 offen lds
    """)
    stage1(p, False)
    T = V_WF[0]
    p(f"""
    v_readfirstlane_b32 s{S_TAG}, v{V_C2}
    v_mov_b32 v{V_C0}, 0x3fb8aa3b
    v_mov_b32 v{V_C1}, 0x358637bd
    """)
    p(f"""
    s_mul_i32 s{S_TAG}, s{S_TAG}, 0x9E3779B1
    s_add_u32 s{S_TAG}, s{S_TAG}, 0x7F4A7C15
    """)
    for i in range(16):
        phi(p, V_AK + i, V_AK + i, T + (i % 4) * 2, T + (i % 4) * 2 + 1)
    PK = T + 8
    VV = T + 16
    ONES = T + 24
    for j in range(2):
        for b in range(2):
            a0 = acc(V_AK, b, j); v0 = acc(V_AV, b, j)
            p(f"v_cvt_pk_bf16_f32 v{PK + j*4 + b*2}, v{a0}, v{a0+1}")
            p(f"v_cvt_pk_bf16_f32 v{PK + j*4 + b*2 + 1}, v{a0+2}, v{a0+3}")
            p(f"v_cvt_pk_bf16_f32 v{VV + j*4 + b*2}, v{v0}, v{v0+1}")
            p(f"v_cvt_pk_bf16_f32 v{VV + j*4 + b*2 + 1}, v{v0+2}, v{v0+3}")
    for i in range(4):
        p(f"v_mov_b32 v{ONES+i}, 0x3f803f80")
    KVD = V_AK
    for j in range(2):
        p(mfma32(vr(KVD + j*4, 4), vr(PK + j*4, 4), vr(VV + j*4, 4), "0"))
        p(mfma32(vr(KVD + 8 + j*4, 4), vr(ONES, 4), vr(PK + j*4, 4), "0"))
    A0 = T; A1 = T + 1
    p(f"""
    s_lshl_b32 s{S_T0}, s{S_HP}, 3
    s_add_u32 s{S_T0}, s{S_T0}, s{S_RG}
    s_lshl_b32 s{S_T1}, s{S_T0}, 10
    s_add_u32 s{S_T1}, s{S_T1}, {RED}
    v_lshl_add_u32 v{A0}, v{L}, 4, s{S_T1}
    s_lshl_b32 s{S_T1}, s{S_T0}, 6
    s_add_u32 s{S_T1}, s{S_T1}, {RED + 16384}
    v_and_b32 v{A1}, 15, v{L}
    v_lshl_add_u32 v{A1}, v{A1}, 2, s{S_T1}
    """)
    for j in range(2):
        p(f"ds_write_b128 v{A0}, {vr(KVD + j*4, 4)} offset:{j * 4096}")
        p(f"ds_write_b32 v{A1}, v{KVD + 8 + j*4} offset:{j * 256}")
    p("s_waitcnt lgkmcnt(0)")
    p("s_barrier")
    lab = p.newlabel("A_NOPUB")
    p(f"s_cmp_lg_u32 s{S_HP}, 0")
    p(f"s_cbranch_scc1 {lab}")
    R = T + 4
    p(f"""
    s_lshl_b32 s{S_T1}, s{S_RG}, 12
    s_add_u32 s{S_T1}, s{S_T1}, {RED}
    v_lshl_add_u32 v{A0}, v{L}, 4, s{S_T1}
    s_lshl_b32 s{S_T1}, s{S_RG}, 8
    s_add_u32 s{S_T1}, s{S_T1}, {RED + 16384}
    v_and_b32 v{A1}, 15, v{L}
    v_lshl_add_u32 v{A1}, v{A1}, 2, s{S_T1}
    """)
    for i in range(4):
        p(f"ds_read_b128 {vr(R + i*4, 4)}, v{A0} offset:{i * 1024}")
        p(f"ds_read_b32 v{R + 16 + i}, v{A1} offset:{i * 64}")
    p("s_waitcnt lgkmcnt(0)")
    for i in range(1, 4):
        for r in range(4):
            p(f"v_add_f32 v{R + r}, v{R + r}, v{R + i*4 + r}")
        p(f"v_add_f32 v{R + 16}, v{R + 16}, v{R + 16 + i}")
    G = R + 4
    p(f"""
    v_cvt_pk_bf16_f32 v{G}, v{R}, v{R+1}
    v_cvt_pk_bf16_f32 v{G+1}, v{R+2}, v{R+3}
    v_mov_b32 v{G+2}, v{R+16}
    v_mov_b32 v{G+3}, s{S_TAG}
    s_lshl_b32 s{S_T0}, s{S_HG}, 4
    s_add_u32 s{S_T0}, s{S_T0}, s{S_RB}
    s_lshl_b32 s{S_T0}, s{S_T0}, 2
    s_add_u32 s{S_T0}, s{S_T0}, s{S_RG}
    s_lshl_b32 s{S_T0}, s{S_T0}, 10
    s_add_u32 s{S_T0}, s{S_T0}, {OFF_KV}
    v_lshlrev_b32 v{A0}, 4, v{L}
    buffer_store_dwordx4 {vr(G, 4)}, v{A0}, s[{S_WS}:{S_WS+3}], s{S_T0} offen sc1
    """)
    p.label(lab)
    lab2 = p.newlabel("A_PUBD")
    p(f"s_cmp_eq_u32 s{S_HP}, 0")
    p(f"s_cbranch_scc1 {lab2}")
    p(f"buffer_load_dword v{V_C3}, v{V_LANE}, s[{S_GATE}:{S_GATE+3}], 0 offen")
    p.label(lab2)
    stage2(p, extra_vm=1)
    for i in range(16):
        phi(p, V_AQ + i, V_AQ + i, T + (i % 4) * 2, T + (i % 4) * 2 + 1)
    PQ = V_AK
    for b in range(2):
        for j in range(2):
            a0 = acc(V_AQ, b, j)
            p(f"v_cvt_pk_bf16_f32 v{PQ + (b*2+j)*2}, v{a0}, v{a0+1}")
            p(f"v_cvt_pk_bf16_f32 v{PQ + (b*2+j)*2 + 1}, v{a0+2}, v{a0+3}")
    GB = V_WF[0]
    p(f"""
    s_lshl_b32 s{S_T0}, s{S_HG}, 4
    s_lshl_b32 s{S_T1}, s{S_RG}, 2
    s_add_u32 s{S_T0}, s{S_T0}, s{S_T1}
    s_lshl_b32 s{S_T0}, s{S_T0}, 2
    s_lshl_b32 s{S_T1}, s{S_HP}, 1
    s_add_u32 s{S_T0}, s{S_T0}, s{S_T1}
    s_lshl_b32 s{S_T0}, s{S_T0}, 10
    s_add_u32 s{S_T3}, s{S_T0}, {OFF_KV}
    v_lshlrev_b32 v{V_C2}, 4, v{L}
    s_mov_b32 s{S_CNT}, 0
    """)
    S_G = [60, 61, 62, 63]
    for i in range(4):
        p(f"s_add_u32 s{S_G[i]}, s{S_T3}, {i * 4096}")
    def gather_issue():
        for i in range(4):
            for j in range(2):
                r = GB + (i * 2 + j) * 4
                p(f"buffer_load_dwordx4 {vr(r, 4)}, v{V_C2}, s[{S_WS}:{S_WS+3}], s{S_G[i]} offen offset:{j*1024} sc1")
    gather_issue()
    labg = p.newlabel("A_NOGATE")
    p(f"""
    s_lshr_b32 s{S_T0}, s{S_HG}, 1
    s_and_b32 s{S_T1}, s{S_HG}, 1
    s_lshl_b32 s{S_T1}, s{S_T1}, 2
    s_add_u32 s{S_T0}, s{S_T0}, s{S_T1}
    s_cmp_lg_u32 s{S_T0}, s{S_WAVE}
    s_cbranch_scc1 {labg}
    """)
    GW = 60
    GA = V_AV
    p(f"""
    v_lshrrev_b32 v{V_T+2}, 4, v{L}
    v_lshlrev_b32 v{V_T+2}, 4, v{V_T+2}
    v_add_u32 v{V_T+2}, {GATE_L}, v{V_T+2}
    """)
    labb1 = p.newlabel("A_GB1"); labge = p.newlabel("A_GEND")
    p(f"s_cmp_eq_u32 s{S_HP}, 1")
    p(f"s_cbranch_scc1 {labb1}")
    for b in range(2):
        if b == 1: p.label(labb1)
        for tq in range(4):
            for u in range(4):
                t = tq * 4 + u
                p(f"ds_read_b128 {vr(GW + u*4, 4)}, v{V_T+2} offset:{t * 64}")
            p("s_waitcnt lgkmcnt(0)")
            for u in range(4):
                t = tq * 4 + u
                p(mfma32(vr(GA, 4), vr(GW + u*4, 4), ar(xfr(t, b), 4), "0" if t == 0 else vr(GA, 4)))
        if b == 0: p(f"s_branch {labge}")
    p.label(labge)
    p(f"""
    v_mul_f32 v{GA+1}, v{GA}, v{V_C0}
    v_sub_f32 v{GA+1}, 0, v{GA+1}
    v_exp_f32 v{GA+1}, v{GA+1}
    v_add_f32 v{GA+1}, 1.0, v{GA+1}
    v_rcp_f32 v{GA+1}, v{GA+1}
    s_lshl_b32 s{S_T0}, s{S_RB}, 7
    s_lshl_b32 s{S_T1}, s{S_HG}, 4
    s_add_u32 s{S_T0}, s{S_T0}, s{S_T1}
    s_lshl_b32 s{S_T0}, s{S_T0}, 2
    s_add_u32 s{S_T0}, s{S_T0}, {OFF_G}
    v_lshlrev_b32 v{GA+2}, 2, v{L}
    s_mov_b64 exec, 0xffff
    buffer_store_dword v{GA+1}, v{GA+2}, s[{S_WS}:{S_WS+3}], s{S_T0} offen
    s_mov_b64 exec, -1
    """)
    p.label(labg)
    labp = p.newlabel("A_POLL"); labok = p.newlabel("A_GOT")
    p.label(labp)
    p("s_waitcnt vmcnt(0)")
    p(f"v_mov_b32 v{V_T+2}, s{S_TAG}")
    p(f"v_xor_b32 v{V_T+3}, v{GB+3}, v{V_T+2}")
    for k in range(1, 8):
        p(f"v_xor_b32 v{60}, v{GB + k*4 + 3}, v{V_T+2}")
        p(f"v_or_b32 v{V_T+3}, v{V_T+3}, v{60}")
    p(f"v_cmp_ne_u32 vcc, 0, v{V_T+3}")
    p(f"s_cbranch_vccz {labok}")
    p(f"s_add_u32 s{S_CNT}, s{S_CNT}, 1")
    p(f"s_cmp_ge_u32 s{S_CNT}, {SPIN_LIMIT}")
    p(f"s_cbranch_scc1 {labok}")
    p("s_sleep 2")
    gather_issue()
    p(f"s_branch {labp}")
    p.label(labok)
    SK = 60
    for j in range(2):
        for i in range(4):
            r = GB + (i * 2 + j) * 4
            d = SK + j * 4
            if i == 0:
                p(f"v_lshlrev_b32 v{d}, 16, v{r}")
                p(f"v_and_b32 v{d+1}, 0xffff0000, v{r}")
                p(f"v_lshlrev_b32 v{d+2}, 16, v{r+1}")
                p(f"v_and_b32 v{d+3}, 0xffff0000, v{r+1}")
                p(f"v_mov_b32 v{68+j}, v{r+2}")
            else:
                p(f"v_lshlrev_b32 v{70}, 16, v{r}")
                p(f"v_and_b32 v{71}, 0xffff0000, v{r}")
                p(f"v_lshlrev_b32 v{72}, 16, v{r+1}")
                p(f"v_and_b32 v{73}, 0xffff0000, v{r+1}")
                for q in range(4):
                    p(f"v_add_f32 v{d+q}, v{d+q}, v{70+q}")
                p(f"v_add_f32 v{68+j}, v{68+j}, v{r+2}")
    A0 = V_T; A1 = V_T + 1
    p(f"""
    s_lshl_b32 s{S_T0}, s{S_HP}, 3
    s_add_u32 s{S_T0}, s{S_T0}, s{S_RG}
    s_lshl_b32 s{S_T1}, s{S_T0}, 10
    s_add_u32 s{S_T1}, s{S_T1}, {RED}
    v_lshl_add_u32 v{A0}, v{L}, 4, s{S_T1}
    s_lshl_b32 s{S_T1}, s{S_T0}, 6
    s_add_u32 s{S_T1}, s{S_T1}, {RED + 16384}
    v_and_b32 v{A1}, 15, v{L}
    v_lshl_add_u32 v{A1}, v{A1}, 2, s{S_T1}
    """)
    for j in range(2):
        p(f"ds_write_b128 v{A0}, {vr(SK + j*4, 4)} offset:{j * 4096}")
        p(f"ds_write_b32 v{A1}, v{68 + j} offset:{j * 256}")
    p("s_waitcnt lgkmcnt(0)")
    p("s_barrier")
    labe = p.newlabel("A_NOEP")
    p(f"""
    s_or_b32 s{S_T0}, s{S_RB}, s{S_WAVE}
    s_cmp_lg_u32 s{S_T0}, 0
    s_cbranch_scc1 {labe}
    s_lshl_b32 s{S_T0}, s{S_HG}, 7
    v_mov_b32 v{V_T+2}, s{S_TAG}
    v_mov_b32 v{V_T+3}, 0
    s_mov_b64 exec, 1
    buffer_store_dword v{V_T+2}, v{V_T+3}, s[{S_WS}:{S_WS+3}], s{S_T0} offen offset:{OFF_E} sc1
    s_mov_b64 exec, -1
    """)
    p.label(labe)
    p(f"""
    s_lshl_b32 s{S_T1}, s{S_HP}, 13
    s_add_u32 s{S_T1}, s{S_T1}, {RED}
    v_lshl_add_u32 v{A0}, v{L}, 4, s{S_T1}
    s_lshl_b32 s{S_T1}, s{S_HP}, 9
    s_add_u32 s{S_T1}, s{S_T1}, {RED + 16384}
    v_lshrrev_b32 v{A1}, 4, v{L}
    v_lshl_add_u32 v{A1}, v{A1}, 4, s{S_T1}
    """)
    for j in range(2):
        for i in range(4):
            p(f"ds_read_b128 {vr(GB + (j*4+i)*4, 4)}, v{A0} offset:{j*4096 + i*1024}")
    p("s_waitcnt lgkmcnt(0)")
    KT = 60
    for j in range(2):
        for i in range(1, 4):
            for q in range(4):
                p(f"v_add_f32 v{GB + j*16 + q}, v{GB + j*16 + q}, v{GB + j*16 + i*4 + q}")
        p(f"v_cvt_pk_bf16_f32 v{KT + j*2}, v{GB + j*16}, v{GB + j*16 + 1}")
        p(f"v_cvt_pk_bf16_f32 v{KT + j*2 + 1}, v{GB + j*16 + 2}, v{GB + j*16 + 3}")
    for j in range(2):
        for i in range(4):
            p(f"ds_read_b128 {vr(GB + (j*4+i)*4, 4)}, v{A1} offset:{j*256 + i*64}")
    p("s_waitcnt lgkmcnt(0)")
    for j in range(2):
        for i in range(1, 4):
            for q in range(4):
                p(f"v_add_f32 v{GB + j*16 + q}, v{GB + j*16 + q}, v{GB + j*16 + i*4 + q}")
        p(f"v_cvt_pk_bf16_f32 v{KT + 4 + j*2}, v{GB + j*16}, v{GB + j*16 + 1}")
        p(f"v_cvt_pk_bf16_f32 v{KT + 4 + j*2 + 1}, v{GB + j*16 + 2}, v{GB + j*16 + 3}")
    NUM = V_AV
    DEN = V_AQ
    for b in range(2):
        for j in range(2):
            pq = vr(PQ + (b*2+j)*2, 2)
            p(mfma16(vr(acc(NUM, b, j), 4), vr(KT + j*2, 2), pq, "0"))
            p(mfma16(vr(acc(DEN, b, j), 4), vr(KT + 4 + j*2, 2), pq, "0"))
    OF = GB
    for b in range(2):
        for j in range(2):
            d = acc(DEN, b, j); n = acc(NUM, b, j)
            p(f"v_add_f32 v{d}, v{d}, v{V_C1}")
            p(f"v_rcp_f32 v{d}, v{d}")
    for b in range(2):
        for j in range(2):
            d = acc(DEN, b, j); n = acc(NUM, b, j)
            for q in range(4):
                p(f"v_mul_f32 v{n+q}, v{n+q}, v{d}")
            p(f"v_cvt_pk_bf16_f32 v{OF + b*4 + j*2}, v{n}, v{n+1}")
            p(f"v_cvt_pk_bf16_f32 v{OF + b*4 + j*2 + 1}, v{n+2}, v{n+3}")
    store_ofrags(p, OF, 0)

def store_ofrags(p, OF, branch):
    p(f"""
    s_lshl_b32 s{S_T0}, s{S_RB}, 3
    s_lshl_b32 s{S_T1}, s{S_RG}, 1
    s_add_u32 s{S_T0}, s{S_T0}, s{S_T1}
    s_lshl_b32 s{S_T0}, s{S_T0}, 5
    s_lshl_b32 s{S_T1}, s{S_HG}, 1
    s_add_u32 s{S_T0}, s{S_T0}, s{S_T1}
    s_add_u32 s{S_T0}, s{S_T0}, s{S_HP}
    s_add_u32 s{S_T0}, s{S_T0}, {branch * 16}
    s_lshl_b32 s{S_T0}, s{S_T0}, 10
    s_add_u32 s{S_T0}, s{S_T0}, {OFF_O}
    s_add_u32 s{S_T1}, s{S_T0}, {32 * 1024}
    v_lshlrev_b32 v{V_T}, 4, v{V_LANE}
    buffer_store_dwordx4 {vr(OF, 4)}, v{V_T}, s[{S_WS}:{S_WS+3}], s{S_T0} offen
    buffer_store_dwordx4 {vr(OF+4, 4)}, v{V_T}, s[{S_WS}:{S_WS+3}], s{S_T1} offen
    """)

def k1_B(p):
    L = V_LANE
    ws_srd(p)
    stage1(p, True)
    KT = V_WF[1]
    VF = 52
    KP = 64
    HT = 68
    for j in range(2):
        for b in range(2):
            a0 = acc(V_AK, b, j); v0 = acc(V_AV, b, j)
            p(f"v_cvt_pk_bf16_f32 v{KT + (j*2+b)*2}, v{a0}, v{a0+1}")
            p(f"v_cvt_pk_bf16_f32 v{KT + (j*2+b)*2 + 1}, v{a0+2}, v{a0+3}")
            p(f"v_cvt_pk_bf16_f32 v{VF + j*6 + 2 + b*2}, v{v0}, v{v0+1}")
            p(f"v_cvt_pk_bf16_f32 v{VF + j*6 + 2 + b*2 + 1}, v{v0+2}, v{v0+3}")
    p(f"v_cvt_pk_bf16_f32 v{HT}, v{V_AH}, v{V_AH+1}")
    p(f"v_cvt_pk_bf16_f32 v{HT+1}, v{V_AH+2}, v{V_AH+3}")
    A0 = V_T; A1 = V_T + 1
    p(f"""
    s_lshl_b32 s{S_T0}, s{S_HP}, 2
    s_add_u32 s{S_T0}, s{S_T0}, s{S_RG}
    s_lshl_b32 s{S_T0}, s{S_T0}, 11
    s_add_u32 s{S_T0}, s{S_T0}, {RED}
    v_lshl_add_u32 v{A0}, v{L}, 3, s{S_T0}
    """)
    lab = p.newlabel("B_NOW")
    p(f"s_cmp_eq_u32 s{S_RG}, 3")
    p(f"s_cbranch_scc1 {lab}")
    for j in range(2):
        p(f"ds_write_b64 v{A0}, {vr(KT + (j*2+1)*2, 2)} offset:{2048 + j*1024}")
        p(f"ds_write_b64 v{A0}, {vr(VF + j*6 + 4, 2)} offset:{2048 + j*1024 + 512}")
    p.label(lab)
    labv = p.newlabel("B_HV"); labd = p.newlabel("B_HD")
    p(f"""
    s_lshl_b32 s{S_T0}, s{S_HP}, 13
    s_and_b32 s{S_T1}, s{S_RG}, 1
    s_lshl_b32 s{S_T1}, s{S_T1}, 10
    s_add_u32 s{S_T0}, s{S_T0}, s{S_T1}
    s_add_u32 s{S_T0}, s{S_T0}, {RED}
    s_cmp_ge_u32 s{S_RG}, 2
    s_cbranch_scc1 {labv}
    """)
    p(f"""
    v_and_b32 v{A1}, 15, v{L}
    v_lshrrev_b32 v{V_T+2}, 2, v{A1}
    v_lshlrev_b32 v{V_T+2}, 7, v{V_T+2}
    v_lshrrev_b32 v{V_T+3}, 4, v{L}
    v_lshl_add_u32 v{V_T+2}, v{V_T+3}, 5, v{V_T+2}
    v_and_b32 v{A1}, 3, v{A1}
    v_lshl_add_u32 v{V_T+2}, v{A1}, 1, v{V_T+2}
    v_add_u32 v{V_T+2}, s{S_T0}, v{V_T+2}
    ds_write_b16 v{V_T+2}, v{HT} offset:0
    ds_write_b16_d16_hi v{V_T+2}, v{HT} offset:8
    ds_write_b16 v{V_T+2}, v{HT+1} offset:16
    ds_write_b16_d16_hi v{V_T+2}, v{HT+1} offset:24
    s_branch {labd}
    """)
    p.label(labv)
    p(f"""
    v_lshl_add_u32 v{V_T+2}, v{L}, 3, s{S_T0}
    ds_write_b64 v{V_T+2}, {vr(HT, 2)} offset:512
    """)
    p.label(labd)
    p(f"v_mov_b32 v{V_C3}, v{A0}")
    stage2(p, extra_vm=0)
    for j in range(2):
        p(f"ds_read_b64 {vr(KP + j*2, 2)}, v{V_C3} offset:{j*1024}")
        p(f"ds_read_b64 {vr(VF + j*6, 2)}, v{V_C3} offset:{j*1024 + 512}")
    QT = 28
    for b in range(2):
        for j in range(2):
            a0 = acc(V_AQ, b, j)
            p(f"v_cvt_pk_bf16_f32 v{QT + (b*2+j)*2}, v{a0}, v{a0+1}")
            p(f"v_cvt_pk_bf16_f32 v{QT + (b*2+j)*2 + 1}, v{a0+2}, v{a0+3}")
    BO = 36; BP = 40; BP0 = V_AH
    T0, T1, T2, T3 = V_T, V_T + 1, V_T + 2, V_T + 3
    p(f"""
    v_and_b32 v{T0}, 15, v{L}
    v_lshrrev_b32 v{T1}, 4, v{L}
    v_lshlrev_b32 v{T1}, 2, v{T1}
    v_sub_u32 v{T0}, v{T0}, v{T1}
    v_mov_b32 v{T3}, 0xcf6e6b28
    s_or_b32 s{S_T0}, s{S_RB}, s{S_RG}
    s_cmp_eq_u32 s{S_T0}, 0
    s_cselect_b64 s[{S_M2}:{S_M2+1}], 0, -1
    """)
    for r in range(4):
        p(f"""
        v_subrev_u32 v{T1}, {r}, v{T0}
        v_and_b32 v{T2}, 1, v{T1}
        v_cmp_eq_u32 s[{S_M0}:{S_M0+1}], 0, v{T2}
        v_cmp_le_i32 s[{S_M1}:{S_M1+1}], 0, v{T1}
        s_and_b64 s[{S_M1}:{S_M1+1}], s[{S_M1}:{S_M1+1}], s[{S_M0}:{S_M0+1}]
        v_cndmask_b32 v{BO+r}, v{T3}, 0, s[{S_M1}:{S_M1+1}]
        v_cmp_ge_i32 s[{S_M1}:{S_M1+1}], -2, v{T1}
        s_and_b64 s[{S_M1}:{S_M1+1}], s[{S_M1}:{S_M1+1}], s[{S_M0}:{S_M0+1}]
        v_cndmask_b32 v{BP+r}, v{T3}, 0, s[{S_M1}:{S_M1+1}]
        s_and_b64 s[{S_M1}:{S_M1+1}], s[{S_M1}:{S_M1+1}], s[{S_M2}:{S_M2+1}]
        v_cndmask_b32 v{BP0+r}, v{T3}, 0, s[{S_M1}:{S_M1+1}]
        """)
    ONES = 68
    p(f"v_mov_b32 v{V_C0}, 0x3eb8aa3b")
    for i in range(4):
        p(f"v_mov_b32 v{ONES+i}, 0x3f803f80")
    p("s_waitcnt lgkmcnt(0)")
    for b in range(2):
        for j in range(2):
            u = b * 2 + j
            q = vr(QT + u * 2, 2)
            kprev = vr(KP + j*2, 2) if b == 0 else vr(KT + (j*2+0)*2, 2)
            kown = vr(KT + (j*2+b)*2, 2)
            p(mfma16(vr(V_AK + u*4, 4), kprev, q, vr(BP0 if b == 0 else BP, 4)))
            p(mfma16(vr(V_AV + u*4, 4), kown, q, vr(BO, 4)))
    MX = V_AQ
    for u in range(4):
        a = V_AK + u*4; c = V_AV + u*4
        p(f"v_max3_f32 v{MX+u}, v{a}, v{a+1}, v{a+2}")
        p(f"v_max3_f32 v{MX+u}, v{MX+u}, v{a+3}, v{c}")
        p(f"v_max3_f32 v{MX+u}, v{MX+u}, v{c+1}, v{c+2}")
        p(f"v_max_f32 v{MX+u}, v{MX+u}, v{c+3}")
    for sw in ("v_permlane32_swap_b32", "v_permlane16_swap_b32"):
        for u in range(4):
            p(f"v_mov_b32 v{MX+4+u}, v{MX+u}")
        for u in range(4):
            p(f"{sw} v{MX+u}, v{MX+4+u}")
        for u in range(4):
            p(f"v_max_f32 v{MX+u}, v{MX+u}, v{MX+4+u}")
    for u in range(4):
        p(f"v_mul_f32 v{MX+u}, v{MX+u}, v{V_C0}")
    for u in range(4):
        for base in (V_AK, V_AV):
            for r in range(4):
                x = base + u*4 + r
                p(f"v_fma_f32 v{x}, v{x}, v{V_C0}, -v{MX+u}")
        for base in (V_AK, V_AV):
            for r in range(4):
                x = base + u*4 + r
                p(f"v_exp_f32 v{x}, v{x}")
    PF = 28
    for u in range(4):
        a = V_AK + u*4; c = V_AV + u*4
        p(f"v_cvt_pk_bf16_f32 v{PF + u*4}, v{a}, v{a+1}")
        p(f"v_cvt_pk_bf16_f32 v{PF + u*4 + 1}, v{a+2}, v{a+3}")
        p(f"v_cvt_pk_bf16_f32 v{PF + u*4 + 2}, v{c}, v{c+1}")
        p(f"v_cvt_pk_bf16_f32 v{PF + u*4 + 3}, v{c+2}, v{c+3}")
    for b in range(2):
        for j in range(2):
            u = b * 2 + j
            vf = vr(VF + j*6 + b*2, 4)
            p(mfma32(vr(V_AK + u*4, 4), vf, vr(PF + u*4, 4), "0"))
            p(mfma32(vr(V_AV + u*4, 4), vr(ONES, 4), vr(PF + u*4, 4), "0"))
    OF = 44
    for u in range(4):
        p(f"v_rcp_f32 v{V_AV + u*4}, v{V_AV + u*4}")
    for b in range(2):
        for j in range(2):
            u = b * 2 + j
            n = V_AK + u*4
            for q in range(4):
                p(f"v_mul_f32 v{n+q}, v{n+q}, v{V_AV + u*4}")
            p(f"v_cvt_pk_bf16_f32 v{OF + b*4 + j*2}, v{n}, v{n+1}")
            p(f"v_cvt_pk_bf16_f32 v{OF + b*4 + j*2 + 1}, v{n+2}, v{n+3}")
    store_ofrags(p, OF, 1)

def gen_k1():
    p = Prog()
    k1_prologue(p)
    p(f"s_cmp_eq_u32 s{S_BR}, 1")
    p("s_cbranch_scc1 K1_B")
    k1_A(p)
    p("s_waitcnt vmcnt(0)")
    p("s_endpgm")
    p.label("K1_B")
    k1_B(p)
    p("s_waitcnt vmcnt(0)")
    p.label("K1_END")
    p("s_endpgm")
    return p

def gen_k2():
    p = Prog()
    SO = 8; SWO = 12; SOUT = 16
    W, RBK, BR, ROT, RB64, CB = 24, 25, 26, 27, 28, 29
    T0, T1, T2, T3 = 30, 31, 32, 33
    OB, WB, MB = 34, 35, 36
    L = 1; T = 2
    VW0, VW1, VO, VG = 6, 7, 8, 9
    VA = [10, 11, 12, 13]
    OFR = 16
    WF = [80, 96]
    ACC = 112
    p(f"""
    s_cmp_ge_u32 s2, 256
    s_cbranch_scc1 K2_END
    s_load_dwordx2 s[4:5], s[0:1], 16
    s_load_dwordx2 s[6:7], s[0:1], 40
    s_load_dwordx2 s[20:21], s[0:1], 56
    s_load_dwordx2 s[22:23], s[0:1], 72
    v_lshrrev_b32 v{T}, 6, v0
    v_and_b32 v{L}, 63, v0
    v_readfirstlane_b32 s{W}, v{T}
    s_and_b32 s{T0}, s2, 7
    s_lshr_b32 s{T1}, s2, 3
    s_lshr_b32 s{RB64}, s{T0}, 1
    s_lshl_b32 s{RB64}, s{RB64}, 3
    s_and_b32 s{T2}, s{T1}, 7
    s_add_u32 s{RB64}, s{RB64}, s{T2}
    s_lshr_b32 s{T3}, s{T1}, 3
    s_and_b32 s{CB}, s{T0}, 1
    s_lshl_b32 s{CB}, s{CB}, 2
    s_add_u32 s{CB}, s{CB}, s{T3}
    s_lshl_b32 s{ROT}, s{T3}, 1
    s_add_u32 s{ROT}, s{ROT}, s{T2}
    s_and_b32 s{ROT}, s{ROT}, 7
    s_and_b32 s{RBK}, s{W}, 3
    s_lshr_b32 s{BR}, s{W}, 2
    """)
    p(f"""
    v_lshrrev_b32 v{T}, 3, v{L}
    v_lshrrev_b32 v{T+1}, 4, v{L}
    v_lshlrev_b32 v{T+2}, 1, v{T+1}
    v_and_b32 v{T+3}, 7, v{L}
    v_xor_b32 v{T+2}, v{T+2}, v{T+3}
    v_lshlrev_b32 v{T+2}, 4, v{T+2}
    v_lshl_add_u32 v{VW0}, v{T}, 10, v{T+2}
    v_add_u32 v{VW1}, {8192-1024}, v{VW0}
    v_lshlrev_b32 v{VO}, 4, v{L}
    """)
    p(f"""
    s_lshl_b32 s{OB}, s{RB64}, 2
    s_add_u32 s{OB}, s{OB}, s{RBK}
    s_lshl_b32 s{OB}, s{OB}, 5
    s_lshl_b32 s{T0}, s{BR}, 4
    s_add_u32 s{OB}, s{OB}, s{T0}
    s_lshl_b32 s{OB}, s{OB}, 10
    s_add_u32 s{OB}, s{OB}, {OFF_O}
    s_lshl_b32 s{WB}, s{RBK}, 14
    s_lshl_b32 s{T0}, s{CB}, 7
    s_add_u32 s{WB}, s{WB}, s{T0}
    s_lshl_b32 s{MB}, s{BR}, 16
    s_lshl_b32 s{T0}, s{RBK}, 11
    s_add_u32 s{MB}, s{MB}, s{T0}
    s_cmp_eq_u32 s{BR}, 0
    s_waitcnt lgkmcnt(0)
    s_cselect_b32 s{SWO}, s4, s6
    s_cselect_b32 s{SWO+1}, s5, s7
    s_mov_b32 s{SWO+2}, {512*1024}
    s_mov_b32 s{SWO+3}, 0x20000
    s_mov_b32 s{SO}, s22
    s_mov_b32 s{SO+1}, s23
    s_mov_b32 s{SO+2}, {WS_BYTES}
    s_mov_b32 s{SO+3}, 0x20000
    s_mov_b32 s{SOUT}, s20
    s_mov_b32 s{SOUT+1}, s21
    s_mov_b32 s{SOUT+2}, {2048*1024}
    s_mov_b32 s{SOUT+3}, 0x20000
    """)
    p(f"""
    s_lshl_b32 s{T0}, s{RB64}, 6
    s_lshl_b32 s{T1}, s{RBK}, 4
    s_add_u32 s{T0}, s{T0}, s{T1}
    s_lshl_b32 s{T1}, s{T0}, 2
    s_add_u32 s{T1}, s{T1}, {OFF_G}
    v_and_b32 v{T}, 15, v{L}
    v_lshlrev_b32 v{T}, 2, v{T}
    buffer_load_dword v{VG}, v{T}, s[{SO}:{SO+3}], s{T1} offen
    s_lshl_b32 s37, s{T0}, 10
    """)
    for pos in range(8):
        p(f"""
        s_add_u32 s{T0}, s{ROT}, {pos}
        s_and_b32 s{T0}, s{T0}, 7
        s_lshl_b32 s{T1}, s{T0}, 16
        s_add_u32 s{T1}, s{T1}, s{WB}
        s_add_u32 m0, s{MB}, {pos * 8192}
        s_lshl_b32 s{T2}, s{T0}, 11
        s_add_u32 s{T2}, s{T2}, s{OB}
        buffer_load_dwordx4 v{VW0}, s[{SWO}:{SWO+3}], s{T1} offen lds
        buffer_load_dwordx4 v{VW1}, s[{SWO}:{SWO+3}], s{T1} offen offset:1024 lds
        buffer_load_dwordx4 {vr(OFR + (2*pos)*4, 4)}, v{VO}, s[{SO}:{SO+3}], s{T2} offen
        buffer_load_dwordx4 {vr(OFR + (2*pos+1)*4, 4)}, v{VO}, s[{SO}:{SO+3}], s{T2} offen offset:1024
        """)
    p(f"""
    v_lshrrev_b32 v{T}, 4, v{L}
    v_bfe_u32 v{T+1}, v{L}, 2, 2
    v_lshrrev_b32 v{T+2}, 1, v{T+1}
    v_lshl_add_u32 v{T+2}, v{T}, 1, v{T+2}
    v_and_b32 v{T+2}, 3, v{T+2}
    v_lshlrev_b32 v{T+2}, 5, v{T+2}
    v_lshl_add_u32 v{T+3}, v{T}, 2, v{T+1}
    v_lshl_add_u32 v{T+2}, v{T+3}, 7, v{T+2}
    v_and_b32 v{T+3}, 3, v{L}
    v_lshl_add_u32 v{T+2}, v{T+3}, 3, v{T+2}
    s_lshl_b32 s{T0}, s{BR}, 16
    v_add_u32 v{VA[0]}, s{T0}, v{T+2}
    v_xor_b32 v{VA[1]}, 32, v{VA[0]}
    v_xor_b32 v{VA[2]}, 64, v{VA[0]}
    v_xor_b32 v{VA[3]}, 96, v{VA[0]}
    """)
    def reads(t, st):
        pos, ks = t >> 1, t & 1
        for c4 in range(4):
            f = WF[st] + c4 * 4
            o = pos * 8192 + ks * 4096
            p(f"ds_read_b64_tr_b16 {vr(f, 2)}, v{VA[c4]} offset:{o}")
            p(f"ds_read_b64_tr_b16 {vr(f+2, 2)}, v{VA[c4]} offset:{o + 2048}")
    def mf(t, st):
        for c4 in range(4):
            d = ACC + c4 * 4
            p(mfma32(vr(d, 4), vr(WF[st] + c4*4, 4), vr(OFR + t*4, 4), "0" if t == 0 else vr(d, 4)))
    for pos in range(8):
        n = 4 * (7 - pos)
        if pos == 0: p(f"s_waitcnt vmcnt({n})")
        else: p(f"s_waitcnt vmcnt({n}) lgkmcnt(0)")
        p("s_barrier")
        reads(2*pos, 0)
        if pos > 0: mf(2*pos - 1, 1)
        reads(2*pos + 1, 1)
        p("s_waitcnt lgkmcnt(8)")
        mf(2*pos, 0)
    p("s_waitcnt lgkmcnt(0)")
    mf(15, 1)
    lab = p.newlabel("K2_A")
    p(f"""
    s_lshl_b32 s{T0}, s{RBK}, 12
    s_add_u32 s{T0}, s{T0}, 131072
    v_lshl_add_u32 v{T}, v{L}, 4, s{T0}
    s_cmp_eq_u32 s{BR}, 0
    s_cbranch_scc1 {lab}
    v_sub_f32 v{VG}, 1.0, v{VG}
    """)
    for i in range(16):
        p(f"v_mul_f32 v{ACC+i}, v{ACC+i}, v{VG}")
    for c4 in range(4):
        p(f"ds_write_b128 v{T}, {vr(ACC + c4*4, 4)} offset:{c4*1024}")
    p("s_waitcnt lgkmcnt(0)")
    p("s_barrier")
    p("s_endpgm")
    p.label(lab)
    p("s_barrier")
    for c4 in range(4):
        p(f"ds_read_b128 {vr(WF[0] + c4*4, 4)}, v{T} offset:{c4*1024}")
    p(f"""
    v_and_b32 v{T+1}, 15, v{L}
    v_lshlrev_b32 v{T+1}, 10, v{T+1}
    v_lshrrev_b32 v{T+2}, 4, v{L}
    v_lshl_add_u32 v{T+1}, v{T+2}, 3, v{T+1}
    s_lshl_b32 s{T0}, s{CB}, 7
    s_add_u32 s{T0}, s{T0}, s37
    s_waitcnt lgkmcnt(0)
    """)
    for c4 in range(4):
        for q in range(4):
            p(f"v_fma_f32 v{ACC + c4*4 + q}, v{ACC + c4*4 + q}, v{VG}, v{WF[0] + c4*4 + q}")
        p(f"v_cvt_pk_bf16_f32 v{OFR + c4*2}, v{ACC + c4*4}, v{ACC + c4*4 + 1}")
        p(f"v_cvt_pk_bf16_f32 v{OFR + c4*2 + 1}, v{ACC + c4*4 + 2}, v{ACC + c4*4 + 3}")
        p(f"buffer_store_dwordx2 {vr(OFR + c4*2, 2)}, v{T+1}, s[{SOUT}:{SOUT+3}], s{T0} offen offset:{c4*32}")
    p("s_waitcnt vmcnt(0)")
    p.label("K2_END")
    p("s_endpgm")
    return p

HDR = open("gated_mix__linear_attn_block__sliding_local_dilated__prompt.s.ref").read().split("; Override launch")[0]

def desc(name, vgpr, sgpr, accum):
    return f""".amdhsa_kernel {name}
  .amdhsa_next_free_vgpr {vgpr}
  .amdhsa_next_free_sgpr {sgpr}
  .amdhsa_accum_offset {accum}
  .amdhsa_group_segment_fixed_size 0
  .amdhsa_kernarg_size 80
  .amdhsa_user_sgpr_count 2
  .amdhsa_user_sgpr_kernarg_segment_ptr 1
  .amdhsa_system_sgpr_workgroup_id_x 1
  .amdhsa_float_denorm_mode_32 3
.end_amdhsa_kernel
"""

def main(outp):
    k1, n1 = gen_k1().text()
    k2, n2 = gen_k2().text()
    print("hazard pads:", n1, n2, file=sys.stderr)
    s = HDR
    s += f"; @launch kernel=k1_kernel grid=(256,1,1) block=(512,1,1) lds={LDS_K1}\n"
    s += f"; @launch kernel=k2_kernel grid=(256,1,1) block=(512,1,1) lds={131072 + 16384}\n"
    s += '.amdgcn_target "amdgcn-amd-amdhsa--gfx950"\n.text\n'
    for name, body in (("k1_kernel", k1), ("k2_kernel", k2)):
        s += f".globl {name}\n.p2align 8\n.type {name},@function\n{name}:\n{body}"
    s += '.section .rodata,"a"\n'
    s += ".p2align 6\n" + desc("k1_kernel", 256, 64, 128)
    s += ".p2align 6\n" + desc("k2_kernel", 128, 40, 128)
    open(outp, "w").write(s)

if __name__ == "__main__":
    main(sys.argv[1])
```

```python
import sys
from fw import *

OFF_E = 0
OFF_G = 4096
OFF_KV = 65536
OFF_O = 1 << 20
WS_BYTES = 268435456

SLOT = 34816
XH_OFF = 16384
W_OFF = 18432
MISC = 4 * SLOT
GATE_L = MISC
RED = MISC + 1024
LDS_K1 = 163840
SPIN_LIMIT = 1 << 20

DEBUG_STAMPS = False
STAMP_BASE = 64
class Stamps:
    n = 0
def stamp(p):
    if not DEBUG_STAMPS: return
    i = Stamps.n; Stamps.n += 1
    p(f"s_memrealtime s[{STAMP_BASE + 2*i}:{STAMP_BASE + 2*i + 1}]")
    p("s_waitcnt lgkmcnt(0)")
def stamp_flush(p, dbg_lo, wg_sel, base_word, nmax=6, minmax_word=None, dbg_adj=0):
    if not DEBUG_STAMPS: return
    n = Stamps.n
    lab = p.newlabel("ST")
    p("s_waitcnt lgkmcnt(0)")
    p(f"s_load_dwordx2 s[{dbg_lo}:{dbg_lo+1}], s[0:1], 64")
    p("s_memrealtime s[98:99]")
    p("s_waitcnt lgkmcnt(0)")
    if dbg_adj:
        p(f"s_sub_u32 s{dbg_lo}, s{dbg_lo}, {dbg_adj}")
        p(f"s_subb_u32 s{dbg_lo+1}, s{dbg_lo+1}, 0")
    p("v_cmp_eq_u32 vcc, 0, v0")
    p("s_and_saveexec_b64 s[96:97], vcc")
    p(f"s_cbranch_execz {lab}")
    p("v_mov_b32 v2, 0")
    p(f"s_not_b32 s100, s{STAMP_BASE}")
    p("v_mov_b32 v3, s100")
    p(f"global_atomic_umax v2, v3, s[{dbg_lo}:{dbg_lo+1}] offset:{4*minmax_word}")
    p("v_mov_b32 v4, s98")
    p(f"global_atomic_umax v2, v4, s[{dbg_lo}:{dbg_lo+1}] offset:{4*minmax_word+4}")
    p(f"s_cmp_lg_u32 s2, {wg_sel}")
    p(f"s_cbranch_scc1 {lab}")
    for i in range(min(n, nmax)):
        p(f"v_mov_b32 v5, s{STAMP_BASE + 2*i}")
        p(f"global_store_dword v2, v5, s[{dbg_lo}:{dbg_lo+1}] offset:{4*(base_word+i)}")
        p("s_nop 1")
    p.label(lab)
    p("s_mov_b64 exec, -1")
    p("s_waitcnt vmcnt(0)")

def mfma32(d, a, b, c):
    return f"v_mfma_f32_16x16x32_bf16 {d}, {a}, {b}, {c}"
def mfma16(d, a, b, c):
    return f"v_mfma_f32_16x16x16_bf16 {d}, {a}, {b}, {c}"

V_LANE = 1
V_X0, V_X1, V_W, V_H = 2, 3, 4, 5
V_XR = [[6, 7], [8, 9]]
V_WR = [[10, 11], [12, 13]]
V_XH = [[14, 15], [16, 17]]
V_WH = [18, 19]
V_C0, V_C1, V_C2, V_C3 = 20, 21, 22, 23
V_T = 24
V_WF = [28, 44]
V_XHF = [60, 64]
V_WHF = [68, 72]
V_AK = 76; V_AV = 92; V_AQ = 108; V_AH = 124
def acc(base, b, j): return base + (b * 2 + j) * 4
def xfr(t, b): return (t * 2 + b) * 4

S_X = 8; S_W = 12; S_WS = 16; S_GATE = 20
S_WAVE = 24; S_RB = 25; S_HG = 26; S_ROT = 27
S_XB = 28; S_WB = 29; S_HB = 30
S_MX = 31; S_MW = 32; S_MH = 33
S_T0 = 34; S_T1 = 35; S_T2 = 36; S_T3 = 37
S_RG = 38; S_HP = 39; S_TAG = 40; S_BR = 41
S_QB = 42
S_SAVE = 44
S_M0 = 46; S_M1 = 48; S_M2 = 50
S_CNT = 52

def k1_prologue(p):
    Stamps.n = 0
    stamp(p)
    p(f"""
    s_cmp_ge_u32 s2, 256
    s_cbranch_scc1 K1_END
    s_load_dwordx2 s[4:5], s[0:1], 0
    s_load_dwordx2 s[6:7], s[0:1], 8
    s_load_dwordx2 s[54:55], s[0:1], 32
    s_load_dwordx2 s[56:57], s[0:1], 48
    s_load_dwordx2 s[58:59], s[0:1], 72
    v_lshrrev_b32 v{V_T}, 6, v0
    v_and_b32 v{V_LANE}, 63, v0
    v_readfirstlane_b32 s{S_WAVE}, v{V_T}
    s_and_b32 s{S_T0}, s2, 7
    s_lshr_b32 s{S_T1}, s2, 3
    s_and_b32 s{S_RB}, s{S_T0}, 1
    s_lshl_b32 s{S_RB}, s{S_RB}, 3
    s_and_b32 s{S_T2}, s{S_T1}, 7
    s_add_u32 s{S_RB}, s{S_RB}, s{S_T2}
    s_lshr_b32 s{S_T3}, s{S_T1}, 3
    s_lshl_b32 s{S_ROT}, s{S_T3}, 1
    s_add_u32 s{S_ROT}, s{S_ROT}, s{S_T2}
    s_and_b32 s{S_ROT}, s{S_ROT}, 7
    s_lshr_b32 s{S_T0}, s{S_T0}, 1
    s_lshl_b32 s{S_T0}, s{S_T0}, 2
    s_add_u32 s{S_T0}, s{S_T0}, s{S_T3}
    s_lshr_b32 s{S_BR}, s{S_T0}, 3
    s_and_b32 s{S_HG}, s{S_T0}, 7
    s_and_b32 s{S_RG}, s{S_WAVE}, 3
    s_lshr_b32 s{S_HP}, s{S_WAVE}, 2
    """)
    L, T = V_LANE, V_T
    p(f"""
    v_lshrrev_b32 v{T}, 3, v{L}
    v_lshrrev_b32 v{T+1}, 4, v{L}
    v_and_b32 v{T+2}, 7, v{L}
    v_xor_b32 v{T+3}, v{T+2}, v{T+1}
    v_lshlrev_b32 v{T+3}, 4, v{T+3}
    v_lshl_add_u32 v{V_X0}, v{T}, 10, v{T+3}
    v_xor_b32 v{V_X1}, 64, v{V_X0}
    v_add_u32 v{V_X1}, {8192-1024}, v{V_X1}
    """)
    p(f"""
    s_and_b32 s{S_T0}, s{S_WAVE}, 1
    s_lshl_b32 s{S_T0}, s{S_T0}, 2
    v_and_b32 v{T+1}, 1, v{T+1}
    v_lshlrev_b32 v{T+1}, 1, v{T+1}
    v_or_b32 v{T+1}, s{S_T0}, v{T+1}
    v_xor_b32 v{T+3}, v{T+2}, v{T+1}
    v_lshlrev_b32 v{T+3}, 4, v{T+3}
    v_mul_u32_u24 v{V_W}, 3072, v{T}
    v_add_u32 v{V_W}, v{V_W}, v{T+3}
    """)
    p(f"""
    v_xor_b32 v{T+3}, s{S_WAVE}, v{T+2}
    v_lshlrev_b32 v{T+3}, 4, v{T+3}
    v_lshl_add_u32 v{V_H}, v{T}, 10, v{T+3}
    """)
    p(f"""
    s_lshl_b32 s{S_XB}, s{S_RB}, 17
    s_lshl_b32 s{S_T0}, s{S_WAVE}, 14
    s_add_u32 s{S_XB}, s{S_XB}, s{S_T0}
    s_mul_i32 s{S_QB}, s{S_WAVE}, {8*3072}
    s_lshl_b32 s{S_T0}, s{S_HG}, 7
    s_add_u32 s{S_QB}, s{S_QB}, s{S_T0}
    s_add_u32 s{S_WB}, s{S_QB}, 1024
    s_lshl_b32 s{S_HB}, s{S_RB}, 7
    s_sub_u32 s{S_HB}, s{S_HB}, 16
    s_max_i32 s{S_HB}, s{S_HB}, 0
    s_lshl_b32 s{S_T0}, s{S_WAVE}, 1
    s_add_u32 s{S_HB}, s{S_HB}, s{S_T0}
    s_lshl_b32 s{S_HB}, s{S_HB}, 10
    s_lshl_b32 s{S_MX}, s{S_WAVE}, 11
    s_add_u32 s{S_MW}, s{S_MX}, {W_OFF}
    s_lshl_b32 s{S_MH}, s{S_WAVE}, 8
    s_add_u32 s{S_MH}, s{S_MH}, {XH_OFF}
    s_cmp_eq_u32 s{S_BR}, 0
    s_waitcnt lgkmcnt(0)
    s_cselect_b32 s{S_W}, s6, s54
    s_cselect_b32 s{S_W+1}, s7, s55
    s_mov_b32 s{S_W+2}, {512*3072}
    s_mov_b32 s{S_W+3}, 0x20000
    s_mov_b32 s{S_X}, s4
    s_mov_b32 s{S_X+1}, s5
    s_mov_b32 s{S_X+2}, {2048*1024}
    s_mov_b32 s{S_X+3}, 0x20000
    """)

def dma_slice(p, q, isB):
    so = (q % 4) * SLOT
    p(f"""
    s_add_u32 s{S_T0}, s{S_ROT}, {q}
    s_and_b32 s{S_T0}, s{S_T0}, 7
    s_lshl_b32 s{S_T1}, s{S_T0}, 7
    s_mul_i32 s{S_T2}, s{S_T0}, {64*3072}
    s_add_u32 s{S_T3}, s{S_T1}, s{S_XB}
    s_add_u32 m0, s{S_MX}, {so}
    s_add_u32 s{S_T2}, s{S_T2}, s{S_WB}
    buffer_load_dwordx4 v{V_X0}, s[{S_X}:{S_X+3}], s{S_T3} offen lds
    buffer_load_dwordx4 v{V_X1}, s[{S_X}:{S_X+3}], s{S_T3} offen offset:1024 lds
    s_add_u32 m0, s{S_MW}, {so}
    s_nop 0
    buffer_load_dwordx4 v{V_W}, s[{S_W}:{S_W+3}], s{S_T2} offen lds
    buffer_load_dwordx4 v{V_W}, s[{S_W}:{S_W+3}], s{S_T2} offen offset:1024 lds
    """)
    if isB:
        p(f"""
        s_add_u32 s{S_T1}, s{S_T1}, s{S_HB}
        s_add_u32 m0, s{S_MH}, {so}
        s_mov_b64 exec, 0xffff
        buffer_load_dwordx4 v{V_H}, s[{S_X}:{S_X+3}], s{S_T1} offen lds
        s_mov_b64 exec, -1
        """)

def dma_wq(p, half):
    for pp in range(4 * half, 4 * half + 4):
        ldso = half * SLOT + ((pp >> 1) & 1) * 16384 + (pp & 1) * 1024
        p(f"""
        s_add_u32 s{S_T0}, s{S_ROT}, {pp}
        s_and_b32 s{S_T0}, s{S_T0}, 7
        s_mul_i32 s{S_T2}, s{S_T0}, {64*3072}
        s_add_u32 m0, s{S_MX}, {ldso}
        s_add_u32 s{S_T2}, s{S_T2}, s{S_QB}
        buffer_load_dwordx4 v{V_W}, s[{S_W}:{S_W+3}], s{S_T2} offen lds
        """)

def read_addr_setup(p, isB):
    L, T = V_LANE, V_T
    p(f"""
    v_and_b32 v{T}, 15, v{L}
    v_lshrrev_b32 v{T+1}, 4, v{L}
    v_lshrrev_b32 v{T+2}, 1, v{T}
    v_xor_b32 v{T+2}, v{T+2}, v{T+1}
    v_lshlrev_b32 v{T+2}, 4, v{T+2}
    v_lshl_add_u32 v{T+2}, v{T}, 7, v{T+2}
    s_lshl_b32 s{S_T0}, s{S_RG}, 12
    v_add_u32 v{V_XR[0][0]}, s{S_T0}, v{T+2}
    v_xor_b32 v{V_XR[0][1]}, 64, v{V_XR[0][0]}
    v_add_u32 v{V_XR[1][0]}, {2*SLOT}, v{V_XR[0][0]}
    v_add_u32 v{V_XR[1][1]}, {2*SLOT}, v{V_XR[0][1]}
    """)
    if isB:
        p(f"""
        v_add_u32 v{V_XH[0][0]}, {XH_OFF}, v{T+2}
        v_xor_b32 v{V_XH[0][1]}, 64, v{V_XH[0][0]}
        v_add_u32 v{V_XH[1][0]}, {2*SLOT}, v{V_XH[0][0]}
        v_add_u32 v{V_XH[1][1]}, {2*SLOT}, v{V_XH[0][1]}
        """)
    p(f"""
    v_lshrrev_b32 v{T+2}, 2, v{T}
    v_lshrrev_b32 v{T+3}, 1, v{T+2}
    v_and_b32 v{V_C0}, 1, v{T+1}
    v_lshl_or_b32 v{T+3}, v{V_C0}, 1, v{T+3}
    s_lshl_b32 s{S_T0}, s{S_HP}, 1
    v_xor_b32 v{T+3}, s{S_T0}, v{T+3}
    v_lshlrev_b32 v{T+3}, 5, v{T+3}
    v_lshl_add_u32 v{T+3}, v{T+2}, 7, v{T+3}
    v_lshl_add_u32 v{T+3}, v{T+1}, 11, v{T+3}
    v_and_b32 v{V_C0}, 3, v{L}
    v_lshl_add_u32 v{V_WR[0][0]}, v{V_C0}, 3, v{T+3}
    v_xor_b32 v{V_WR[0][1]}, 32, v{V_WR[0][0]}
    v_add_u32 v{V_WR[1][0]}, {2*SLOT}, v{V_WR[0][0]}
    v_add_u32 v{V_WR[1][1]}, {2*SLOT}, v{V_WR[0][1]}
    """)
    if isB:
        p(f"""
        s_and_b32 s{S_T0}, s{S_RG}, 1
        s_lshl_b32 s{S_T0}, s{S_T0}, 5
        s_lshr_b32 s{S_T1}, s{S_RG}, 1
        s_lshl_b32 s{S_T1}, s{S_T1}, 10
        v_xor_b32 v{V_WH[0]}, s{S_T0}, v{V_WR[0][0]}
        v_add_u32 v{V_WH[0]}, s{S_T1}, v{V_WH[0]}
        v_add_u32 v{V_WH[1]}, {2*SLOT}, v{V_WH[0]}
        """)

def s1_reads(p, pos, ks, st, isB):
    slot = pos % 4; hi = slot >> 1; so = (slot & 1) * SLOT
    t = 2 * pos + ks
    n = 0
    for b in range(2):
        p(f"ds_read_b128 {ar(xfr(t, b), 4)}, v{V_XR[hi][ks]} offset:{so + b * 2048}"); n += 1
    for m in range(2):
        for j in range(2):
            f = V_WF[st] + (m * 2 + j) * 4
            o = so + W_OFF + ks * 8192 + m * 1024
            p(f"ds_read_b64_tr_b16 {vr(f, 2)}, v{V_WR[hi][j]} offset:{o}")
            p(f"ds_read_b64_tr_b16 {vr(f+2, 2)}, v{V_WR[hi][j]} offset:{o + 512}"); n += 2
    if isB:
        p(f"ds_read_b128 {vr(V_XHF[st], 4)}, v{V_XH[hi][ks]} offset:{so}")
        o = so + W_OFF + ks * 8192
        p(f"ds_read_b64_tr_b16 {vr(V_WHF[st], 2)}, v{V_WH[hi]} offset:{o}")
        p(f"ds_read_b64_tr_b16 {vr(V_WHF[st]+2, 2)}, v{V_WH[hi]} offset:{o + 512}"); n += 3
    return n

def s1_mfmas(p, t, st, isB):
    first = (t == 0)
    for m in range(2):
        for j in range(2):
            for b in range(2):
                d = acc(V_AK if m == 0 else V_AV, b, j)
                w = vr(V_WF[st] + (m * 2 + j) * 4, 4)
                x = ar(xfr(t, b), 4)
                c = "0" if first else vr(d, 4)
                if isB and m == 0:
                    p(mfma32(vr(d, 4), w, x, c))
                else:
                    p(mfma32(vr(d, 4), x, w, c))
    if isB:
        c = "0" if first else vr(V_AH, 4)
        p(mfma32(vr(V_AH, 4), vr(V_XHF[st], 4), vr(V_WHF[st], 4), c))

def stage1(p, isB, mid_hook=None):
    nper = 5 if isB else 4
    nrd = 13 if isB else 10
    for q in range(3):
        dma_slice(p, q, isB)
    read_addr_setup(p, isB)
    if mid_hook: mid_hook(p)
    groups = [("s", 0, nper), ("s", 1, nper), ("s", 2, nper)]
    def wait_for(idx_name):
        k = [i for i, g in enumerate(groups) if (g[0], g[1]) == idx_name][0]
        return sum(g[2] for g in groups[k + 1:])
    for pos in range(8):
        n = wait_for(("s", pos))
        if pos == 0:
            p(f"s_waitcnt vmcnt({n})")
        else:
            p(f"s_waitcnt vmcnt({n}) lgkmcnt(0)")
        p("s_barrier")
        s1_reads(p, pos, 0, 0, isB)
        q = pos + 3
        if q < 8:
            dma_slice(p, q, isB); groups.append(("s", q, nper))
        elif q == 8:
            dma_wq(p, 0); groups.append(("q", 0, 4))
        elif q == 9:
            dma_wq(p, 1); groups.append(("q", 1, 4))
        if pos > 0:
            s1_mfmas(p, 2 * pos - 1, 1, isB)
        s1_reads(p, pos, 1, 1, isB)
        p(f"s_waitcnt lgkmcnt({nrd})")
        s1_mfmas(p, 2 * pos, 0, isB)
    p("s_waitcnt lgkmcnt(0)")
    s1_mfmas(p, 15, 1, isB)

def s2_reads(p, t, st):
    pos, ks = t >> 1, t & 1
    half = pos >> 2
    o = half * SLOT + ((pos >> 1) & 1) * 16384 + (pos & 1) * 1024 + ks * 8192
    for j in range(2):
        f = V_WF[0] + st * 8 + j * 4
        p(f"ds_read_b64_tr_b16 {vr(f, 2)}, v{V_WR[0][j]} offset:{o}")
        p(f"ds_read_b64_tr_b16 {vr(f+2, 2)}, v{V_WR[0][j]} offset:{o + 512}")

def s2_mfmas(p, t, st):
    for j in range(2):
        for b in range(2):
            d = acc(V_AQ, b, j)
            w = vr(V_WF[0] + st * 8 + j * 4, 4)
            c = "0" if t == 0 else vr(d, 4)
            p(mfma32(vr(d, 4), w, ar(xfr(t, b), 4), c))

def stage2(p, extra_vm=0):
    p(f"s_waitcnt vmcnt({4 + extra_vm}) lgkmcnt(0)")
    p("s_barrier")
    s2_reads(p, 0, 0)
    for t in range(16):
        if t == 7:
            p(f"s_waitcnt vmcnt({extra_vm})")
            p("s_barrier")
        if t + 1 < 16:
            s2_reads(p, t + 1, (t + 1) & 1)
            p("s_waitcnt lgkmcnt(4)")
        else:
            p("s_waitcnt lgkmcnt(0)")
        s2_mfmas(p, t, t & 1)

def phi(p, src, dst, tmp, tmp2):
    p(f"""
    v_mul_f32 v{tmp}, v{src}, v{V_C0}
    v_exp_f32_e64 v{tmp}, v{tmp} clamp
    v_add_f32_e64 v{tmp2}, v{src}, abs(v{src})
    v_add_f32 v{tmp}, v{tmp}, v{V_C1}
    v_fma_f32 v{dst}, v{tmp2}, 0.5, v{tmp}
    """)

def ws_srd(p):
    p(f"""
    s_mov_b32 s{S_WS}, s58
    s_mov_b32 s{S_WS+1}, s59
    s_mov_b32 s{S_WS+2}, {WS_BYTES}
    s_mov_b32 s{S_WS+3}, 0x20000
    """)

def k1_A(p):
    L = V_LANE
    def hook(p):
        pass
    ws_srd(p)
    p(f"""
    s_mov_b32 s{S_GATE}, s56
    s_mov_b32 s{S_GATE+1}, s57
    s_mov_b32 s{S_GATE+2}, 1024
    s_mov_b32 s{S_GATE+3}, 0x20000
    """)
    p(f"""
    s_lshl_b32 s{S_T0}, s{S_HG}, 7
    v_mov_b32 v{V_C3}, s{S_T0}
    buffer_load_dword v{V_C2}, v{V_C3}, s[{S_WS}:{S_WS+3}], 0 offen offset:{OFF_E} sc1
    s_lshl_b32 s{S_T0}, s{S_ROT}, 3
    v_add_u32 v{V_C3}, s{S_T0}, v{L}
    v_and_b32 v{V_C3}, 63, v{V_C3}
    v_lshlrev_b32 v{V_C3}, 4, v{V_C3}
    s_mov_b32 m0, {GATE_L}
    s_nop 0
    buffer_load_dwordx4 v{V_C3}, s[{S_GATE}:{S_GATE+3}], 0 offen lds
    """)
    Stamps.n = 1
    stage1(p, False)
    stamp(p)
    T = V_WF[0]
    p(f"""
    v_readfirstlane_b32 s{S_TAG}, v{V_C2}
    v_mov_b32 v{V_C0}, 0x3fb8aa3b
    v_mov_b32 v{V_C1}, 0x358637bd
    """)
    p(f"""
    s_mul_i32 s{S_TAG}, s{S_TAG}, 0x9E3779B1
    s_add_u32 s{S_TAG}, s{S_TAG}, 0x7F4A7C15
    """)
    for i in range(16):
        phi(p, V_AK + i, V_AK + i, T + (i % 4) * 2, T + (i % 4) * 2 + 1)
    PK = T + 8
    VV = T + 16
    ONES = T + 24
    for j in range(2):
        for b in range(2):
            a0 = acc(V_AK, b, j); v0 = acc(V_AV, b, j)
            p(f"v_cvt_pk_bf16_f32 v{PK + j*4 + b*2}, v{a0}, v{a0+1}")
            p(f"v_cvt_pk_bf16_f32 v{PK + j*4 + b*2 + 1}, v{a0+2}, v{a0+3}")
            p(f"v_cvt_pk_bf16_f32 v{VV + j*4 + b*2}, v{v0}, v{v0+1}")
            p(f"v_cvt_pk_bf16_f32 v{VV + j*4 + b*2 + 1}, v{v0+2}, v{v0+3}")
    for i in range(4):
        p(f"v_mov_b32 v{ONES+i}, 0x3f803f80")
    KVD = V_AK
    for j in range(2):
        p(mfma32(vr(KVD + j*4, 4), vr(PK + j*4, 4), vr(VV + j*4, 4), "0"))
        p(mfma32(vr(KVD + 8 + j*4, 4), vr(ONES, 4), vr(PK + j*4, 4), "0"))
    A0 = T; A1 = T + 1
    p(f"""
    s_lshl_b32 s{S_T0}, s{S_HP}, 3
    s_add_u32 s{S_T0}, s{S_T0}, s{S_RG}
    s_lshl_b32 s{S_T1}, s{S_T0}, 10
    s_add_u32 s{S_T1}, s{S_T1}, {RED}
    v_lshl_add_u32 v{A0}, v{L}, 4, s{S_T1}
    s_lshl_b32 s{S_T1}, s{S_T0}, 6
    s_add_u32 s{S_T1}, s{S_T1}, {RED + 16384}
    v_and_b32 v{A1}, 15, v{L}
    v_lshl_add_u32 v{A1}, v{A1}, 2, s{S_T1}
    """)
    for j in range(2):
        p(f"ds_write_b128 v{A0}, {vr(KVD + j*4, 4)} offset:{j * 4096}")
        p(f"ds_write_b32 v{A1}, v{KVD + 8 + j*4} offset:{j * 256}")
    p("s_waitcnt lgkmcnt(0)")
    p("s_barrier")
    lab = p.newlabel("A_NOPUB")
    p(f"s_cmp_lg_u32 s{S_HP}, 0")
    p(f"s_cbranch_scc1 {lab}")
    R = T + 4
    p(f"""
    s_lshl_b32 s{S_T1}, s{S_RG}, 12
    s_add_u32 s{S_T1}, s{S_T1}, {RED}
    v_lshl_add_u32 v{A0}, v{L}, 4, s{S_T1}
    s_lshl_b32 s{S_T1}, s{S_RG}, 8
    s_add_u32 s{S_T1}, s{S_T1}, {RED + 16384}
    v_and_b32 v{A1}, 15, v{L}
    v_lshl_add_u32 v{A1}, v{A1}, 2, s{S_T1}
    """)
    for i in range(4):
        p(f"ds_read_b128 {vr(R + i*4, 4)}, v{A0} offset:{i * 1024}")
        p(f"ds_read_b32 v{R + 16 + i}, v{A1} offset:{i * 64}")
    p("s_waitcnt lgkmcnt(0)")
    for i in range(1, 4):
        for r in range(4):
            p(f"v_add_f32 v{R + r}, v{R + r}, v{R + i*4 + r}")
        p(f"v_add_f32 v{R + 16}, v{R + 16}, v{R + 16 + i}")
    G = R + 4
    p(f"""
    v_cvt_pk_bf16_f32 v{G}, v{R}, v{R+1}
    v_cvt_pk_bf16_f32 v{G+1}, v{R+2}, v{R+3}
    v_mov_b32 v{G+2}, v{R+16}
    v_mov_b32 v{G+3}, s{S_TAG}
    s_lshl_b32 s{S_T0}, s{S_HG}, 4
    s_add_u32 s{S_T0}, s{S_T0}, s{S_RB}
    s_lshl_b32 s{S_T0}, s{S_T0}, 2
    s_add_u32 s{S_T0}, s{S_T0}, s{S_RG}
    s_lshl_b32 s{S_T0}, s{S_T0}, 10
    s_add_u32 s{S_T0}, s{S_T0}, {OFF_KV}
    v_lshlrev_b32 v{A0}, 4, v{L}
    buffer_store_dwordx4 {vr(G, 4)}, v{A0}, s[{S_WS}:{S_WS+3}], s{S_T0} offen sc1
    """)
    p.label(lab)
    lab2 = p.newlabel("A_PUBD")
    p(f"s_cmp_eq_u32 s{S_HP}, 0")
    p(f"s_cbranch_scc1 {lab2}")
    p(f"buffer_load_dword v{V_C3}, v{V_LANE}, s[{S_GATE}:{S_GATE+3}], 0 offen")
    p.label(lab2)
    stamp(p)
    stage2(p, extra_vm=1)
    stamp(p)
    for i in range(16):
        phi(p, V_AQ + i, V_AQ + i, T + (i % 4) * 2, T + (i % 4) * 2 + 1)
    PQ = V_AK
    for b in range(2):
        for j in range(2):
            a0 = acc(V_AQ, b, j)
            p(f"v_cvt_pk_bf16_f32 v{PQ + (b*2+j)*2}, v{a0}, v{a0+1}")
            p(f"v_cvt_pk_bf16_f32 v{PQ + (b*2+j)*2 + 1}, v{a0+2}, v{a0+3}")
    GB = V_WF[0]
    p(f"""
    s_lshl_b32 s{S_T0}, s{S_HG}, 4
    s_lshl_b32 s{S_T1}, s{S_RG}, 2
    s_add_u32 s{S_T0}, s{S_T0}, s{S_T1}
    s_lshl_b32 s{S_T0}, s{S_T0}, 2
    s_lshl_b32 s{S_T1}, s{S_HP}, 1
    s_add_u32 s{S_T0}, s{S_T0}, s{S_T1}
    s_lshl_b32 s{S_T0}, s{S_T0}, 10
    s_add_u32 s{S_T3}, s{S_T0}, {OFF_KV}
    v_lshlrev_b32 v{V_C2}, 4, v{L}
    s_mov_b32 s{S_CNT}, 0
    """)
    S_G = [60, 61, 62, 63]
    for i in range(4):
        p(f"s_add_u32 s{S_G[i]}, s{S_T3}, {i * 4096}")
    def gather_issue():
        for i in range(4):
            for j in range(2):
                r = GB + (i * 2 + j) * 4
                p(f"buffer_load_dwordx4 {vr(r, 4)}, v{V_C2}, s[{S_WS}:{S_WS+3}], s{S_G[i]} offen offset:{j*1024} sc1")
    gather_issue()
    labg = p.newlabel("A_NOGATE")
    p(f"""
    s_lshr_b32 s{S_T0}, s{S_HG}, 1
    s_and_b32 s{S_T1}, s{S_HG}, 1
    s_lshl_b32 s{S_T1}, s{S_T1}, 2
    s_add_u32 s{S_T0}, s{S_T0}, s{S_T1}
    s_cmp_lg_u32 s{S_T0}, s{S_WAVE}
    s_cbranch_scc1 {labg}
    """)
    GW = 60
    GA = V_AV
    p(f"""
    v_lshrrev_b32 v{V_T+2}, 4, v{L}
    v_lshlrev_b32 v{V_T+2}, 4, v{V_T+2}
    v_add_u32 v{V_T+2}, {GATE_L}, v{V_T+2}
    """)
    labb1 = p.newlabel("A_GB1"); labge = p.newlabel("A_GEND")
    p(f"s_cmp_eq_u32 s{S_HP}, 1")
    p(f"s_cbranch_scc1 {labb1}")
    for b in range(2):
        if b == 1: p.label(labb1)
        for tq in range(4):
            for u in range(4):
                t = tq * 4 + u
                p(f"ds_read_b128 {vr(GW + u*4, 4)}, v{V_T+2} offset:{t * 64}")
            p("s_waitcnt lgkmcnt(0)")
            for u in range(4):
                t = tq * 4 + u
                p(mfma32(vr(GA, 4), vr(GW + u*4, 4), ar(xfr(t, b), 4), "0" if t == 0 else vr(GA, 4)))
        if b == 0: p(f"s_branch {labge}")
    p.label(labge)
    p(f"""
    v_mul_f32 v{GA+1}, v{GA}, v{V_C0}
    v_sub_f32 v{GA+1}, 0, v{GA+1}
    v_exp_f32 v{GA+1}, v{GA+1}
    v_add_f32 v{GA+1}, 1.0, v{GA+1}
    v_rcp_f32 v{GA+1}, v{GA+1}
    s_lshl_b32 s{S_T0}, s{S_RB}, 7
    s_lshl_b32 s{S_T1}, s{S_HG}, 4
    s_add_u32 s{S_T0}, s{S_T0}, s{S_T1}
    s_lshl_b32 s{S_T0}, s{S_T0}, 2
    s_add_u32 s{S_T0}, s{S_T0}, {OFF_G}
    v_lshlrev_b32 v{GA+2}, 2, v{L}
    s_mov_b64 exec, 0xffff
    buffer_store_dword v{GA+1}, v{GA+2}, s[{S_WS}:{S_WS+3}], s{S_T0} offen
    s_mov_b64 exec, -1
    """)
    p.label(labg)
    labp = p.newlabel("A_POLL"); labok = p.newlabel("A_GOT")
    p.label(labp)
    p("s_waitcnt vmcnt(0)")
    p(f"v_mov_b32 v{V_T+2}, s{S_TAG}")
    p(f"v_xor_b32 v{V_T+3}, v{GB+3}, v{V_T+2}")
    for k in range(1, 8):
        p(f"v_xor_b32 v{60}, v{GB + k*4 + 3}, v{V_T+2}")
        p(f"v_or_b32 v{V_T+3}, v{V_T+3}, v{60}")
    p(f"v_cmp_ne_u32 vcc, 0, v{V_T+3}")
    p(f"s_cbranch_vccz {labok}")
    p(f"s_add_u32 s{S_CNT}, s{S_CNT}, 1")
    p(f"s_cmp_ge_u32 s{S_CNT}, {SPIN_LIMIT}")
    p(f"s_cbranch_scc1 {labok}")
    p("s_sleep 2")
    gather_issue()
    p(f"s_branch {labp}")
    p.label(labok)
    stamp(p)
    SK = 60
    for j in range(2):
        for i in range(4):
            r = GB + (i * 2 + j) * 4
            d = SK + j * 4
            if i == 0:
                p(f"v_lshlrev_b32 v{d}, 16, v{r}")
                p(f"v_and_b32 v{d+1}, 0xffff0000, v{r}")
                p(f"v_lshlrev_b32 v{d+2}, 16, v{r+1}")
                p(f"v_and_b32 v{d+3}, 0xffff0000, v{r+1}")
                p(f"v_mov_b32 v{68+j}, v{r+2}")
            else:
                p(f"v_lshlrev_b32 v{70}, 16, v{r}")
                p(f"v_and_b32 v{71}, 0xffff0000, v{r}")
                p(f"v_lshlrev_b32 v{72}, 16, v{r+1}")
                p(f"v_and_b32 v{73}, 0xffff0000, v{r+1}")
                for q in range(4):
                    p(f"v_add_f32 v{d+q}, v{d+q}, v{70+q}")
                p(f"v_add_f32 v{68+j}, v{68+j}, v{r+2}")
    A0 = V_T; A1 = V_T + 1
    p(f"""
    s_lshl_b32 s{S_T0}, s{S_HP}, 3
    s_add_u32 s{S_T0}, s{S_T0}, s{S_RG}
    s_lshl_b32 s{S_T1}, s{S_T0}, 10
    s_add_u32 s{S_T1}, s{S_T1}, {RED}
    v_lshl_add_u32 v{A0}, v{L}, 4, s{S_T1}
    s_lshl_b32 s{S_T1}, s{S_T0}, 6
    s_add_u32 s{S_T1}, s{S_T1}, {RED + 16384}
    v_and_b32 v{A1}, 15, v{L}
    v_lshl_add_u32 v{A1}, v{A1}, 2, s{S_T1}
    """)
    for j in range(2):
        p(f"ds_write_b128 v{A0}, {vr(SK + j*4, 4)} offset:{j * 4096}")
        p(f"ds_write_b32 v{A1}, v{68 + j} offset:{j * 256}")
    p("s_waitcnt lgkmcnt(0)")
    p("s_barrier")
    labe = p.newlabel("A_NOEP")
    p(f"""
    s_or_b32 s{S_T0}, s{S_RB}, s{S_WAVE}
    s_cmp_lg_u32 s{S_T0}, 0
    s_cbranch_scc1 {labe}
    s_lshl_b32 s{S_T0}, s{S_HG}, 7
    v_mov_b32 v{V_T+2}, s{S_TAG}
    v_mov_b32 v{V_T+3}, 0
    s_mov_b64 exec, 1
    buffer_store_dword v{V_T+2}, v{V_T+3}, s[{S_WS}:{S_WS+3}], s{S_T0} offen offset:{OFF_E} sc1
    s_mov_b64 exec, -1
    """)
    p.label(labe)
    p(f"""
    s_lshl_b32 s{S_T1}, s{S_HP}, 13
    s_add_u32 s{S_T1}, s{S_T1}, {RED}
    v_lshl_add_u32 v{A0}, v{L}, 4, s{S_T1}
    s_lshl_b32 s{S_T1}, s{S_HP}, 9
    s_add_u32 s{S_T1}, s{S_T1}, {RED + 16384}
    v_lshrrev_b32 v{A1}, 4, v{L}
    v_lshl_add_u32 v{A1}, v{A1}, 4, s{S_T1}
    """)
    for j in range(2):
        for i in range(4):
            p(f"ds_read_b128 {vr(GB + (j*4+i)*4, 4)}, v{A0} offset:{j*4096 + i*1024}")
    p("s_waitcnt lgkmcnt(0)")
    KT = 60
    for j in range(2):
        for i in range(1, 4):
            for q in range(4):
                p(f"v_add_f32 v{GB + j*16 + q}, v{GB + j*16 + q}, v{GB + j*16 + i*4 + q}")
        p(f"v_cvt_pk_bf16_f32 v{KT + j*2}, v{GB + j*16}, v{GB + j*16 + 1}")
        p(f"v_cvt_pk_bf16_f32 v{KT + j*2 + 1}, v{GB + j*16 + 2}, v{GB + j*16 + 3}")
    for j in range(2):
        for i in range(4):
            p(f"ds_read_b128 {vr(GB + (j*4+i)*4, 4)}, v{A1} offset:{j*256 + i*64}")
    p("s_waitcnt lgkmcnt(0)")
    for j in range(2):
        for i in range(1, 4):
            for q in range(4):
                p(f"v_add_f32 v{GB + j*16 + q}, v{GB + j*16 + q}, v{GB + j*16 + i*4 + q}")
        p(f"v_cvt_pk_bf16_f32 v{KT + 4 + j*2}, v{GB + j*16}, v{GB + j*16 + 1}")
        p(f"v_cvt_pk_bf16_f32 v{KT + 4 + j*2 + 1}, v{GB + j*16 + 2}, v{GB + j*16 + 3}")
    NUM = V_AV
    DEN = V_AQ
    for b in range(2):
        for j in range(2):
            pq = vr(PQ + (b*2+j)*2, 2)
            p(mfma16(vr(acc(NUM, b, j), 4), vr(KT + j*2, 2), pq, "0"))
            p(mfma16(vr(acc(DEN, b, j), 4), vr(KT + 4 + j*2, 2), pq, "0"))
    OF = GB
    for b in range(2):
        for j in range(2):
            d = acc(DEN, b, j); n = acc(NUM, b, j)
            p(f"v_add_f32 v{d}, v{d}, v{V_C1}")
            p(f"v_rcp_f32 v{d}, v{d}")
    for b in range(2):
        for j in range(2):
            d = acc(DEN, b, j); n = acc(NUM, b, j)
            for q in range(4):
                p(f"v_mul_f32 v{n+q}, v{n+q}, v{d}")
            p(f"v_cvt_pk_bf16_f32 v{OF + b*4 + j*2}, v{n}, v{n+1}")
            p(f"v_cvt_pk_bf16_f32 v{OF + b*4 + j*2 + 1}, v{n+2}, v{n+3}")
    store_ofrags(p, OF, 0)
    stamp(p)
    stamp_flush(p, 90, 0, 4, 6, 0)

def store_ofrags(p, OF, branch):
    p(f"""
    s_lshl_b32 s{S_T0}, s{S_RB}, 3
    s_lshl_b32 s{S_T1}, s{S_RG}, 1
    s_add_u32 s{S_T0}, s{S_T0}, s{S_T1}
    s_lshl_b32 s{S_T0}, s{S_T0}, 5
    s_lshl_b32 s{S_T1}, s{S_HG}, 1
    s_add_u32 s{S_T0}, s{S_T0}, s{S_T1}
    s_add_u32 s{S_T0}, s{S_T0}, s{S_HP}
    s_add_u32 s{S_T0}, s{S_T0}, {branch * 16}
    s_lshl_b32 s{S_T0}, s{S_T0}, 10
    s_add_u32 s{S_T0}, s{S_T0}, {OFF_O}
    s_add_u32 s{S_T1}, s{S_T0}, {32 * 1024}
    v_lshlrev_b32 v{V_T}, 4, v{V_LANE}
    buffer_store_dwordx4 {vr(OF, 4)}, v{V_T}, s[{S_WS}:{S_WS+3}], s{S_T0} offen
    buffer_store_dwordx4 {vr(OF+4, 4)}, v{V_T}, s[{S_WS}:{S_WS+3}], s{S_T1} offen
    """)

def k1_B(p):
    L = V_LANE
    ws_srd(p)
    Stamps.n = 1
    stage1(p, True)
    stamp(p)
    KT = V_WF[1]
    VF = 52
    KP = 64
    HT = 68
    for j in range(2):
        for b in range(2):
            a0 = acc(V_AK, b, j); v0 = acc(V_AV, b, j)
            p(f"v_cvt_pk_bf16_f32 v{KT + (j*2+b)*2}, v{a0}, v{a0+1}")
            p(f"v_cvt_pk_bf16_f32 v{KT + (j*2+b)*2 + 1}, v{a0+2}, v{a0+3}")
            p(f"v_cvt_pk_bf16_f32 v{VF + j*6 + 2 + b*2}, v{v0}, v{v0+1}")
            p(f"v_cvt_pk_bf16_f32 v{VF + j*6 + 2 + b*2 + 1}, v{v0+2}, v{v0+3}")
    p(f"v_cvt_pk_bf16_f32 v{HT}, v{V_AH}, v{V_AH+1}")
    p(f"v_cvt_pk_bf16_f32 v{HT+1}, v{V_AH+2}, v{V_AH+3}")
    A0 = V_T; A1 = V_T + 1
    p(f"""
    s_lshl_b32 s{S_T0}, s{S_HP}, 2
    s_add_u32 s{S_T0}, s{S_T0}, s{S_RG}
    s_lshl_b32 s{S_T0}, s{S_T0}, 11
    s_add_u32 s{S_T0}, s{S_T0}, {RED}
    v_lshl_add_u32 v{A0}, v{L}, 3, s{S_T0}
    """)
    lab = p.newlabel("B_NOW")
    p(f"s_cmp_eq_u32 s{S_RG}, 3")
    p(f"s_cbranch_scc1 {lab}")
    for j in range(2):
        p(f"ds_write_b64 v{A0}, {vr(KT + (j*2+1)*2, 2)} offset:{2048 + j*1024}")
        p(f"ds_write_b64 v{A0}, {vr(VF + j*6 + 4, 2)} offset:{2048 + j*1024 + 512}")
    p.label(lab)
    labv = p.newlabel("B_HV"); labd = p.newlabel("B_HD")
    p(f"""
    s_lshl_b32 s{S_T0}, s{S_HP}, 13
    s_and_b32 s{S_T1}, s{S_RG}, 1
    s_lshl_b32 s{S_T1}, s{S_T1}, 10
    s_add_u32 s{S_T0}, s{S_T0}, s{S_T1}
    s_add_u32 s{S_T0}, s{S_T0}, {RED}
    s_cmp_ge_u32 s{S_RG}, 2
    s_cbranch_scc1 {labv}
    """)
    p(f"""
    v_and_b32 v{A1}, 15, v{L}
    v_lshrrev_b32 v{V_T+2}, 2, v{A1}
    v_lshlrev_b32 v{V_T+2}, 7, v{V_T+2}
    v_lshrrev_b32 v{V_T+3}, 4, v{L}
    v_lshl_add_u32 v{V_T+2}, v{V_T+3}, 5, v{V_T+2}
    v_and_b32 v{A1}, 3, v{A1}
    v_lshl_add_u32 v{V_T+2}, v{A1}, 1, v{V_T+2}
    v_add_u32 v{V_T+2}, s{S_T0}, v{V_T+2}
    ds_write_b16 v{V_T+2}, v{HT} offset:0
    ds_write_b16_d16_hi v{V_T+2}, v{HT} offset:8
    ds_write_b16 v{V_T+2}, v{HT+1} offset:16
    ds_write_b16_d16_hi v{V_T+2}, v{HT+1} offset:24
    s_branch {labd}
    """)
    p.label(labv)
    p(f"""
    v_lshl_add_u32 v{V_T+2}, v{L}, 3, s{S_T0}
    ds_write_b64 v{V_T+2}, {vr(HT, 2)} offset:512
    """)
    p.label(labd)
    p(f"v_mov_b32 v{V_C3}, v{A0}")
    stage2(p, extra_vm=0)
    stamp(p)
    for j in range(2):
        p(f"ds_read_b64 {vr(KP + j*2, 2)}, v{V_C3} offset:{j*1024}")
        p(f"ds_read_b64 {vr(VF + j*6, 2)}, v{V_C3} offset:{j*1024 + 512}")
    QT = 28
    for b in range(2):
        for j in range(2):
            a0 = acc(V_AQ, b, j)
            p(f"v_cvt_pk_bf16_f32 v{QT + (b*2+j)*2}, v{a0}, v{a0+1}")
            p(f"v_cvt_pk_bf16_f32 v{QT + (b*2+j)*2 + 1}, v{a0+2}, v{a0+3}")
    BO = 36; BP = 40; BP0 = V_AH
    T0, T1, T2, T3 = V_T, V_T + 1, V_T + 2, V_T + 3
    p(f"""
    v_and_b32 v{T0}, 15, v{L}
    v_lshrrev_b32 v{T1}, 4, v{L}
    v_lshlrev_b32 v{T1}, 2, v{T1}
    v_sub_u32 v{T0}, v{T0}, v{T1}
    v_mov_b32 v{T3}, 0xcf6e6b28
    s_or_b32 s{S_T0}, s{S_RB}, s{S_RG}
    s_cmp_eq_u32 s{S_T0}, 0
    s_cselect_b64 s[{S_M2}:{S_M2+1}], 0, -1
    """)
    for r in range(4):
        p(f"""
        v_subrev_u32 v{T1}, {r}, v{T0}
        v_and_b32 v{T2}, 1, v{T1}
        v_cmp_eq_u32 s[{S_M0}:{S_M0+1}], 0, v{T2}
        v_cmp_le_i32 s[{S_M1}:{S_M1+1}], 0, v{T1}
        s_and_b64 s[{S_M1}:{S_M1+1}], s[{S_M1}:{S_M1+1}], s[{S_M0}:{S_M0+1}]
        v_cndmask_b32 v{BO+r}, v{T3}, 0, s[{S_M1}:{S_M1+1}]
        v_cmp_ge_i32 s[{S_M1}:{S_M1+1}], -2, v{T1}
        s_and_b64 s[{S_M1}:{S_M1+1}], s[{S_M1}:{S_M1+1}], s[{S_M0}:{S_M0+1}]
        v_cndmask_b32 v{BP+r}, v{T3}, 0, s[{S_M1}:{S_M1+1}]
        s_and_b64 s[{S_M1}:{S_M1+1}], s[{S_M1}:{S_M1+1}], s[{S_M2}:{S_M2+1}]
        v_cndmask_b32 v{BP0+r}, v{T3}, 0, s[{S_M1}:{S_M1+1}]
        """)
    ONES = 68
    p(f"v_mov_b32 v{V_C0}, 0x3eb8aa3b")
    for i in range(4):
        p(f"v_mov_b32 v{ONES+i}, 0x3f803f80")
    p("s_waitcnt lgkmcnt(0)")
    for b in range(2):
        for j in range(2):
            u = b * 2 + j
            q = vr(QT + u * 2, 2)
            kprev = vr(KP + j*2, 2) if b == 0 else vr(KT + (j*2+0)*2, 2)
            kown = vr(KT + (j*2+b)*2, 2)
            p(mfma16(vr(V_AK + u*4, 4), kprev, q, vr(BP0 if b == 0 else BP, 4)))
            p(mfma16(vr(V_AV + u*4, 4), kown, q, vr(BO, 4)))
    MX = V_AQ
    for u in range(4):
        a = V_AK + u*4; c = V_AV + u*4
        p(f"v_max3_f32 v{MX+u}, v{a}, v{a+1}, v{a+2}")
        p(f"v_max3_f32 v{MX+u}, v{MX+u}, v{a+3}, v{c}")
        p(f"v_max3_f32 v{MX+u}, v{MX+u}, v{c+1}, v{c+2}")
        p(f"v_max_f32 v{MX+u}, v{MX+u}, v{c+3}")
    for sw in ("v_permlane32_swap_b32", "v_permlane16_swap_b32"):
        for u in range(4):
            p(f"v_mov_b32 v{MX+4+u}, v{MX+u}")
        for u in range(4):
            p(f"{sw} v{MX+u}, v{MX+4+u}")
        for u in range(4):
            p(f"v_max_f32 v{MX+u}, v{MX+u}, v{MX+4+u}")
    for u in range(4):
        p(f"v_mul_f32 v{MX+u}, v{MX+u}, v{V_C0}")
    for u in range(4):
        for base in (V_AK, V_AV):
            for r in range(4):
                x = base + u*4 + r
                p(f"v_fma_f32 v{x}, v{x}, v{V_C0}, -v{MX+u}")
        for base in (V_AK, V_AV):
            for r in range(4):
                x = base + u*4 + r
                p(f"v_exp_f32 v{x}, v{x}")
    PF = 28
    for u in range(4):
        a = V_AK + u*4; c = V_AV + u*4
        p(f"v_cvt_pk_bf16_f32 v{PF + u*4}, v{a}, v{a+1}")
        p(f"v_cvt_pk_bf16_f32 v{PF + u*4 + 1}, v{a+2}, v{a+3}")
        p(f"v_cvt_pk_bf16_f32 v{PF + u*4 + 2}, v{c}, v{c+1}")
        p(f"v_cvt_pk_bf16_f32 v{PF + u*4 + 3}, v{c+2}, v{c+3}")
    for b in range(2):
        for j in range(2):
            u = b * 2 + j
            vf = vr(VF + j*6 + b*2, 4)
            p(mfma32(vr(V_AK + u*4, 4), vf, vr(PF + u*4, 4), "0"))
            p(mfma32(vr(V_AV + u*4, 4), vr(ONES, 4), vr(PF + u*4, 4), "0"))
    OF = 44
    for u in range(4):
        p(f"v_rcp_f32 v{V_AV + u*4}, v{V_AV + u*4}")
    for b in range(2):
        for j in range(2):
            u = b * 2 + j
            n = V_AK + u*4
            for q in range(4):
                p(f"v_mul_f32 v{n+q}, v{n+q}, v{V_AV + u*4}")
            p(f"v_cvt_pk_bf16_f32 v{OF + b*4 + j*2}, v{n}, v{n+1}")
            p(f"v_cvt_pk_bf16_f32 v{OF + b*4 + j*2 + 1}, v{n+2}, v{n+3}")
    store_ofrags(p, OF, 1)
    stamp(p)
    stamp_flush(p, 90, 4, 10, 4, 0)

def gen_k1():
    p = Prog()
    k1_prologue(p)
    p(f"s_cmp_eq_u32 s{S_BR}, 1")
    p("s_cbranch_scc1 K1_B")
    k1_A(p)
    p("s_waitcnt vmcnt(0)")
    p("s_endpgm")
    p.label("K1_B")
    k1_B(p)
    p("s_waitcnt vmcnt(0)")
    p.label("K1_END")
    p("s_endpgm")
    return p

def gen_k2():
    p = Prog()
    SO = 8; SWO = 12; SOUT = 16
    W, RBK, BR, ROT, RB64, CB = 24, 25, 26, 27, 28, 29
    T0, T1, T2, T3 = 30, 31, 32, 33
    OB, WB, MB = 34, 35, 36
    L = 1; T = 2
    VW0, VW1, VO, VG = 6, 7, 8, 9
    VA = [10, 11, 12, 13]
    OFR = 16
    WF = [80, 96]
    ACC = 112
    Stamps.n = 0
    stamp(p)
    p(f"""
    s_cmp_ge_u32 s2, 256
    s_cbranch_scc1 K2_END
    s_load_dwordx2 s[4:5], s[0:1], 16
    s_load_dwordx2 s[6:7], s[0:1], 40
    s_load_dwordx2 s[20:21], s[0:1], 56
    s_load_dwordx2 s[22:23], s[0:1], 72
    v_lshrrev_b32 v{T}, 6, v0
    v_and_b32 v{L}, 63, v0
    v_readfirstlane_b32 s{W}, v{T}
    s_and_b32 s{T0}, s2, 7
    s_lshr_b32 s{T1}, s2, 3
    s_lshr_b32 s{RB64}, s{T0}, 1
    s_lshl_b32 s{RB64}, s{RB64}, 3
    s_and_b32 s{T2}, s{T1}, 7
    s_add_u32 s{RB64}, s{RB64}, s{T2}
    s_lshr_b32 s{T3}, s{T1}, 3
    s_and_b32 s{CB}, s{T0}, 1
    s_lshl_b32 s{CB}, s{CB}, 2
    s_add_u32 s{CB}, s{CB}, s{T3}
    s_lshl_b32 s{ROT}, s{T3}, 1
    s_add_u32 s{ROT}, s{ROT}, s{T2}
    s_and_b32 s{ROT}, s{ROT}, 7
    s_and_b32 s{RBK}, s{W}, 3
    s_lshr_b32 s{BR}, s{W}, 2
    """)
    p(f"""
    v_lshrrev_b32 v{T}, 3, v{L}
    v_lshrrev_b32 v{T+1}, 4, v{L}
    v_lshlrev_b32 v{T+2}, 1, v{T+1}
    v_and_b32 v{T+3}, 7, v{L}
    v_xor_b32 v{T+2}, v{T+2}, v{T+3}
    v_lshlrev_b32 v{T+2}, 4, v{T+2}
    v_lshl_add_u32 v{VW0}, v{T}, 10, v{T+2}
    v_add_u32 v{VW1}, {8192-1024}, v{VW0}
    v_lshlrev_b32 v{VO}, 4, v{L}
    """)
    p(f"""
    s_lshl_b32 s{OB}, s{RB64}, 2
    s_add_u32 s{OB}, s{OB}, s{RBK}
    s_lshl_b32 s{OB}, s{OB}, 5
    s_lshl_b32 s{T0}, s{BR}, 4
    s_add_u32 s{OB}, s{OB}, s{T0}
    s_lshl_b32 s{OB}, s{OB}, 10
    s_add_u32 s{OB}, s{OB}, {OFF_O}
    s_lshl_b32 s{WB}, s{RBK}, 14
    s_lshl_b32 s{T0}, s{CB}, 7
    s_add_u32 s{WB}, s{WB}, s{T0}
    s_lshl_b32 s{MB}, s{BR}, 16
    s_lshl_b32 s{T0}, s{RBK}, 11
    s_add_u32 s{MB}, s{MB}, s{T0}
    s_cmp_eq_u32 s{BR}, 0
    s_waitcnt lgkmcnt(0)
    s_cselect_b32 s{SWO}, s4, s6
    s_cselect_b32 s{SWO+1}, s5, s7
    s_mov_b32 s{SWO+2}, {512*1024}
    s_mov_b32 s{SWO+3}, 0x20000
    s_mov_b32 s{SO}, s22
    s_mov_b32 s{SO+1}, s23
    s_mov_b32 s{SO+2}, {WS_BYTES}
    s_mov_b32 s{SO+3}, 0x20000
    s_mov_b32 s{SOUT}, s20
    s_mov_b32 s{SOUT+1}, s21
    s_mov_b32 s{SOUT+2}, {2048*1024}
    s_mov_b32 s{SOUT+3}, 0x20000
    """)
    p(f"""
    s_lshl_b32 s{T0}, s{RB64}, 6
    s_lshl_b32 s{T1}, s{RBK}, 4
    s_add_u32 s{T0}, s{T0}, s{T1}
    s_lshl_b32 s{T1}, s{T0}, 2
    s_add_u32 s{T1}, s{T1}, {OFF_G}
    v_and_b32 v{T}, 15, v{L}
    v_lshlrev_b32 v{T}, 2, v{T}
    buffer_load_dword v{VG}, v{T}, s[{SO}:{SO+3}], s{T1} offen
    s_lshl_b32 s37, s{T0}, 10
    """)
    for pos in range(8):
        p(f"""
        s_add_u32 s{T0}, s{ROT}, {pos}
        s_and_b32 s{T0}, s{T0}, 7
        s_lshl_b32 s{T1}, s{T0}, 16
        s_add_u32 s{T1}, s{T1}, s{WB}
        s_add_u32 m0, s{MB}, {pos * 8192}
        s_lshl_b32 s{T2}, s{T0}, 11
        s_add_u32 s{T2}, s{T2}, s{OB}
        buffer_load_dwordx4 v{VW0}, s[{SWO}:{SWO+3}], s{T1} offen lds
        buffer_load_dwordx4 v{VW1}, s[{SWO}:{SWO+3}], s{T1} offen offset:1024 lds
        buffer_load_dwordx4 {vr(OFR + (2*pos)*4, 4)}, v{VO}, s[{SO}:{SO+3}], s{T2} offen
        buffer_load_dwordx4 {vr(OFR + (2*pos+1)*4, 4)}, v{VO}, s[{SO}:{SO+3}], s{T2} offen offset:1024
        """)
    p(f"""
    v_lshrrev_b32 v{T}, 4, v{L}
    v_bfe_u32 v{T+1}, v{L}, 2, 2
    v_lshrrev_b32 v{T+2}, 1, v{T+1}
    v_lshl_add_u32 v{T+2}, v{T}, 1, v{T+2}
    v_and_b32 v{T+2}, 3, v{T+2}
    v_lshlrev_b32 v{T+2}, 5, v{T+2}
    v_lshl_add_u32 v{T+3}, v{T}, 2, v{T+1}
    v_lshl_add_u32 v{T+2}, v{T+3}, 7, v{T+2}
    v_and_b32 v{T+3}, 3, v{L}
    v_lshl_add_u32 v{T+2}, v{T+3}, 3, v{T+2}
    s_lshl_b32 s{T0}, s{BR}, 16
    v_add_u32 v{VA[0]}, s{T0}, v{T+2}
    v_xor_b32 v{VA[1]}, 32, v{VA[0]}
    v_xor_b32 v{VA[2]}, 64, v{VA[0]}
    v_xor_b32 v{VA[3]}, 96, v{VA[0]}
    """)
    def reads(t, st):
        pos, ks = t >> 1, t & 1
        for c4 in range(4):
            f = WF[st] + c4 * 4
            o = pos * 8192 + ks * 4096
            p(f"ds_read_b64_tr_b16 {vr(f, 2)}, v{VA[c4]} offset:{o}")
            p(f"ds_read_b64_tr_b16 {vr(f+2, 2)}, v{VA[c4]} offset:{o + 2048}")
    def mf(t, st):
        for c4 in range(4):
            d = ACC + c4 * 4
            p(mfma32(vr(d, 4), vr(WF[st] + c4*4, 4), vr(OFR + t*4, 4), "0" if t == 0 else vr(d, 4)))
    for pos in range(8):
        n = 4 * (7 - pos)
        if pos == 0: p(f"s_waitcnt vmcnt({n})")
        else: p(f"s_waitcnt vmcnt({n}) lgkmcnt(0)")
        p("s_barrier")
        reads(2*pos, 0)
        if pos > 0: mf(2*pos - 1, 1)
        reads(2*pos + 1, 1)
        p("s_waitcnt lgkmcnt(8)")
        mf(2*pos, 0)
    p("s_waitcnt lgkmcnt(0)")
    mf(15, 1)
    lab = p.newlabel("K2_A")
    p(f"""
    s_lshl_b32 s{T0}, s{RBK}, 12
    s_add_u32 s{T0}, s{T0}, 131072
    v_lshl_add_u32 v{T}, v{L}, 4, s{T0}
    s_cmp_eq_u32 s{BR}, 0
    s_cbranch_scc1 {lab}
    v_sub_f32 v{VG}, 1.0, v{VG}
    """)
    for i in range(16):
        p(f"v_mul_f32 v{ACC+i}, v{ACC+i}, v{VG}")
    for c4 in range(4):
        p(f"ds_write_b128 v{T}, {vr(ACC + c4*4, 4)} offset:{c4*1024}")
    p("s_waitcnt lgkmcnt(0)")
    p("s_barrier")
    p("s_endpgm")
    p.label(lab)
    p("s_barrier")
    for c4 in range(4):
        p(f"ds_read_b128 {vr(WF[0] + c4*4, 4)}, v{T} offset:{c4*1024}")
    p(f"""
    v_and_b32 v{T+1}, 15, v{L}
    v_lshlrev_b32 v{T+1}, 10, v{T+1}
    v_lshrrev_b32 v{T+2}, 4, v{L}
    v_lshl_add_u32 v{T+1}, v{T+2}, 3, v{T+1}
    s_lshl_b32 s{T0}, s{CB}, 7
    s_add_u32 s{T0}, s{T0}, s37
    s_waitcnt lgkmcnt(0)
    """)
    for c4 in range(4):
        for q in range(4):
            p(f"v_fma_f32 v{ACC + c4*4 + q}, v{ACC + c4*4 + q}, v{VG}, v{WF[0] + c4*4 + q}")
        p(f"v_cvt_pk_bf16_f32 v{OFR + c4*2}, v{ACC + c4*4}, v{ACC + c4*4 + 1}")
        p(f"v_cvt_pk_bf16_f32 v{OFR + c4*2 + 1}, v{ACC + c4*4 + 2}, v{ACC + c4*4 + 3}")
        p(f"buffer_store_dwordx2 {vr(OFR + c4*2, 2)}, v{T+1}, s[{SOUT}:{SOUT+3}], s{T0} offen offset:{c4*32}")
    p("s_waitcnt vmcnt(0)")
    stamp_flush(p, 90, 999, 14, 1, 2, dbg_adj=512)
    p.label("K2_END")
    p("s_endpgm")
    return p

HDR = open("gated_mix__linear_attn_block__sliding_local_dilated__prompt.s.ref").read().split("; Override launch")[0]

def desc(name, vgpr, sgpr, accum):
    return f""".amdhsa_kernel {name}
  .amdhsa_next_free_vgpr {vgpr}
  .amdhsa_next_free_sgpr {sgpr}
  .amdhsa_accum_offset {accum}
  .amdhsa_group_segment_fixed_size 0
  .amdhsa_kernarg_size 80
  .amdhsa_user_sgpr_count 2
  .amdhsa_user_sgpr_kernarg_segment_ptr 1
  .amdhsa_system_sgpr_workgroup_id_x 1
  .amdhsa_float_denorm_mode_32 3
.end_amdhsa_kernel
"""

def main(outp):
    k1, n1 = gen_k1().text()
    k2, n2 = gen_k2().text()
    print("hazard pads:", n1, n2, file=sys.stderr)
    s = HDR
    s += f"; @launch kernel=k1_kernel grid=(256,1,1) block=(512,1,1) lds={LDS_K1}\n"
    s += f"; @launch kernel=k2_kernel grid=(256,1,1) block=(512,1,1) lds={131072 + 16384}\n"
    s += '.amdgcn_target "amdgcn-amd-amdhsa--gfx950"\n.text\n'
    for name, body in (("k1_kernel", k1), ("k2_kernel", k2)):
        s += f".globl {name}\n.p2align 8\n.type {name},@function\n{name}:\n{body}"
    s += '.section .rodata,"a"\n'
    s += ".p2align 6\n" + desc("k1_kernel", 256, 102 if DEBUG_STAMPS else 64, 128)
    s += ".p2align 6\n" + desc("k2_kernel", 128, 102 if DEBUG_STAMPS else 40, 128)
    open(outp, "w").write(s)

if __name__ == "__main__":
    if "--stamps" in sys.argv: DEBUG_STAMPS = True
    main(sys.argv[1])
```

```python
import sys
from fw import *

NAME = "gated_mix__linear_attn_block__sliding_local_dilated__prompt_kernel"
OFF_FL = 0
OFF_G = 4096
OFF_KV = 65536
OFF_O = 1 << 20
OFF_ST = 8 << 20
WS_BYTES = 268435456

SLOT = 34816
XH_OFF = 16384
W_OFF = 18432
MISC = 4 * SLOT
GATE_L = MISC
RED = MISC + 1024
WOB_L = 73728
WOA_L = 0
CMB_L = 139264
LDS_BYTES = 163840
SPIN_LIMIT = 1 << 14

DEBUG_STAMPS = False
FINE = False
EXP = ""
CYC = False
STAMP_BASE = 66

class Cap:
    def __init__(self): self.lines = []
    def __call__(self, s):
        for l in s.strip("\n").split("\n"):
            l = l.strip()
            if l: self.lines.append(l)
def capture(fn, *a, **k):
    c = Cap(); fn(c, *a, **k); return c.lines
def split_vm(lines):
    chunks = []; cur = []
    for l in lines:
        if l.startswith("s_mov_b64 exec, -1") and chunks and not cur:
            chunks[-1].append(l); continue
        cur.append(l)
        if l.startswith(("buffer_load", "global_load", "buffer_store")):
            chunks.append(cur); cur = []
    assert not cur, cur
    return chunks

class K(Prog):
    def __init__(self):
        super().__init__()
        self.vm = []
        self.nst = 0
    def __call__(self, s, tag=None):
        for l in s.strip("\n").split("\n"):
            l = l.strip()
            if not l: continue
            self.lines.append(l)
            if l.startswith(("buffer_load", "buffer_store", "global_load", "global_store", "global_atomic", "buffer_atomic")):
                self.vm.append(tag or self.curtag)
    curtag = "?"
    def vmwait(self, tag, extra=""):
        idx = max(i for i, t in enumerate(self.vm) if t == tag)
        n = len(self.vm) - 1 - idx
        assert n <= 63
        self(f"s_waitcnt vmcnt({n}) {extra}".strip())
    def emit_chunk(self, c, tag):
        old = self.curtag; self.curtag = tag
        for l in c: self(l)
        self.curtag = old
    def stamp(self):
        if not DEBUG_STAMPS: return
        if self.nst >= 15: return
        i = self.nst; self.nst += 1
        self(f"{'s_memtime' if CYC else 's_memrealtime'} s[{STAMP_BASE + 2*i}:{STAMP_BASE + 2*i + 1}]")
        self("s_waitcnt lgkmcnt(0)")

def block(p, mfmas, reads, chunks=(), rper=2):
    n = len(mfmas)
    ri = 0
    m = len(chunks)
    cpos = {}
    for i in range(m):
        k = min(n - 1, max(0, (n * (i + 1)) // (m + 1)))
        cpos.setdefault(k, []).append(chunks[i])
    for i, l in enumerate(mfmas):
        p(l)
        for _ in range(rper):
            if ri < len(reads):
                p(reads[ri]); ri += 1
        for tag, c in cpos.get(i, []):
            p.emit_chunk(c, tag)
    while ri < len(reads):
        p(reads[ri]); ri += 1
    if n == 0:
        for tag, c in chunks: p.emit_chunk(c, tag)

def mfma32(d, a, b, c): return f"v_mfma_f32_16x16x32_bf16 {d}, {a}, {b}, {c}"
def mfma16(d, a, b, c): return f"v_mfma_f32_16x16x16_bf16 {d}, {a}, {b}, {c}"

V_LANE = 1
V_X0, V_X1, V_W, V_H = 2, 3, 4, 5
V_XR = [[6, 7], [8, 9]]
V_WR = [[10, 11], [12, 13]]
V_XH = [[14, 15], [16, 17]]
V_WH = [18, 19]
V_C0, V_C1, V_C2, V_C3 = 20, 21, 22, 23
V_T = 24
V_WF = [28, 44]
V_XHF = [60, 64]
V_WHF = [68, 72]
V_AK = 76; V_AV = 92; V_AQ = 108; V_AH = 124
def acc(base, b, j): return base + (b * 2 + j) * 4
def xfr(t, b): return (t * 2 + b) * 4

S_X = 8; S_W = 12; S_WS = 16; S_GATE = 20
S_WAVE = 24; S_RB = 25; S_HG = 26; S_ROT = 27
S_XB = 28; S_WB = 29; S_HB = 30
S_MX = 31; S_MW = 32; S_MH = 33
S_T0 = 34; S_T1 = 35; S_T2 = 36; S_T3 = 37
S_RG = 38; S_HP = 39; S_TAG = 40; S_BR = 41; S_QB = 42; S_CNT = 43
S_M0 = 44; S_M1 = 46; S_M2 = 48
S_G = [50, 51, 52, 53]
S_WOA = 4
S_P_WS = 56; S_P_DBG = 58
S_OUT = 60
S_RB64 = 54; S_CB = 55
S_ROT2 = 64; S_WOB_OFF = 65

def prologue(p):
    p.stamp()
    p(f"""
    s_cmp_ge_u32 s2, 256
    s_cbranch_scc1 L_END
    s_load_dwordx2 s[4:5], s[0:1], 0
    s_load_dwordx2 s[6:7], s[0:1], 8
    s_load_dwordx2 s[54:55], s[0:1], 32
    s_load_dwordx2 s[20:21], s[0:1], 48
    s_load_dwordx4 s[60:63], s[0:1], 56
    s_load_dwordx2 s[{S_P_WS}:{S_P_WS+1}], s[0:1], 72
    v_lshrrev_b32 v{V_T}, 6, v0
    v_and_b32 v{V_LANE}, 63, v0
    v_readfirstlane_b32 s{S_WAVE}, v{V_T}
    s_and_b32 s{S_T0}, s2, 7
    s_lshr_b32 s{S_T1}, s2, 3
    s_and_b32 s{S_RB}, s{S_T0}, 1
    s_lshl_b32 s{S_RB}, s{S_RB}, 3
    s_and_b32 s{S_T2}, s{S_T1}, 7
    s_add_u32 s{S_RB}, s{S_RB}, s{S_T2}
    s_lshr_b32 s{S_T3}, s{S_T1}, 3
    s_lshl_b32 s{S_ROT}, s{S_T3}, 1
    s_add_u32 s{S_ROT}, s{S_ROT}, s{S_T2}
    s_and_b32 s{S_ROT}, s{S_ROT}, 7
    s_lshr_b32 s{S_T0}, s{S_T0}, 1
    s_lshl_b32 s{S_T0}, s{S_T0}, 2
    s_add_u32 s{S_T0}, s{S_T0}, s{S_T3}
    s_lshr_b32 s{S_BR}, s{S_T0}, 3
    s_and_b32 s{S_HG}, s{S_T0}, 7
    s_and_b32 s{S_RG}, s{S_WAVE}, 3
    s_lshr_b32 s{S_HP}, s{S_WAVE}, 2
    """)
    L, T = V_LANE, V_T
    p(f"""
    v_lshrrev_b32 v{T}, 3, v{L}
    v_lshrrev_b32 v{T+1}, 4, v{L}
    v_and_b32 v{T+2}, 7, v{L}
    v_xor_b32 v{T+3}, v{T+2}, v{T+1}
    v_lshlrev_b32 v{T+3}, 4, v{T+3}
    v_lshl_add_u32 v{V_X0}, v{T}, 10, v{T+3}
    v_xor_b32 v{V_X1}, 64, v{V_X0}
    v_add_u32 v{V_X1}, {8192-1024}, v{V_X1}
    s_and_b32 s{S_T0}, s{S_WAVE}, 1
    s_lshl_b32 s{S_T0}, s{S_T0}, 2
    v_and_b32 v{T+1}, 1, v{T+1}
    v_lshlrev_b32 v{T+1}, 1, v{T+1}
    v_or_b32 v{T+1}, s{S_T0}, v{T+1}
    v_xor_b32 v{T+3}, v{T+2}, v{T+1}
    v_lshlrev_b32 v{T+3}, 4, v{T+3}
    v_mul_u32_u24 v{V_W}, 3072, v{T}
    v_add_u32 v{V_W}, v{V_W}, v{T+3}
    v_xor_b32 v{T+3}, s{S_WAVE}, v{T+2}
    v_lshlrev_b32 v{T+3}, 4, v{T+3}
    v_lshl_add_u32 v{V_H}, v{T}, 10, v{T+3}
    s_lshl_b32 s{S_XB}, s{S_RB}, 17
    s_lshl_b32 s{S_T0}, s{S_WAVE}, 14
    s_add_u32 s{S_XB}, s{S_XB}, s{S_T0}
    s_mul_i32 s{S_QB}, s{S_WAVE}, {8*3072}
    s_lshl_b32 s{S_T0}, s{S_HG}, 7
    s_add_u32 s{S_QB}, s{S_QB}, s{S_T0}
    s_add_u32 s{S_WB}, s{S_QB}, 1024
    s_lshl_b32 s{S_HB}, s{S_RB}, 7
    s_sub_u32 s{S_HB}, s{S_HB}, 16
    s_max_i32 s{S_HB}, s{S_HB}, 0
    s_lshl_b32 s{S_T0}, s{S_WAVE}, 1
    s_add_u32 s{S_HB}, s{S_HB}, s{S_T0}
    s_lshl_b32 s{S_HB}, s{S_HB}, 10
    s_lshl_b32 s{S_MX}, s{S_WAVE}, 11
    s_add_u32 s{S_MW}, s{S_MX}, {W_OFF}
    s_lshl_b32 s{S_MH}, s{S_WAVE}, 8
    s_add_u32 s{S_MH}, s{S_MH}, {XH_OFF}
    s_cmp_eq_u32 s{S_BR}, 0
    s_waitcnt lgkmcnt(0)
    s_cselect_b32 s{S_W}, s6, s54
    s_cselect_b32 s{S_W+1}, s7, s55
    s_mov_b32 s{S_W+2}, {512*3072}
    s_mov_b32 s{S_W+3}, 0x20000
    s_mov_b32 s{S_X}, s4
    s_mov_b32 s{S_X+1}, s5
    s_mov_b32 s{S_X+2}, {2048*1024}
    s_mov_b32 s{S_X+3}, 0x20000
    """)

def prologue2(p):
    p(f"""
    s_mov_b32 s{S_P_DBG}, s62
    s_mov_b32 s{S_P_DBG+1}, s63
    s_mov_b32 s{S_OUT+2}, {2048*1024}
    s_mov_b32 s{S_OUT+3}, 0x20000
    s_mov_b32 s{S_WS}, s{S_P_WS}
    s_mov_b32 s{S_WS+1}, s{S_P_WS+1}
    s_mov_b32 s{S_WS+2}, {WS_BYTES}
    s_mov_b32 s{S_WS+3}, 0x20000
    s_load_dwordx2 s[4:5], s[0:1], 16
    s_load_dwordx2 s[6:7], s[0:1], 40
    """)
    lab = p.newlabel("NONCE")
    p(f"""
    s_or_b32 s{S_T0}, s2, s{S_WAVE}
    s_cmp_lg_u32 s{S_T0}, 0
    s_cbranch_scc1 {lab}
    s_memrealtime s[{S_M0}:{S_M0+1}]
    s_waitcnt lgkmcnt(0)
    s_mul_i32 s{S_M0}, s{S_M0}, 0x9E3779B1
    s_or_b32 s{S_M0}, s{S_M0}, 1
    v_mov_b32 v{V_T}, s{S_M0}
    v_mov_b32 v{V_T+1}, 0
    s_mov_b64 exec, 1
    """)
    p.lines.append(f"global_store_dword v{V_T+1}, v{V_T}, s[{S_P_DBG}:{S_P_DBG+1}] sc1")
    p("s_mov_b64 exec, -1")
    p.label(lab)
    p(f"v_mov_b32 v22, 0")
    p(f"""
    s_and_b32 s{S_T0}, s2, 7
    s_lshr_b32 s{S_T1}, s2, 3
    s_lshr_b32 s{S_RB64}, s{S_T0}, 1
    s_lshl_b32 s{S_RB64}, s{S_RB64}, 3
    s_and_b32 s{S_T2}, s{S_T1}, 7
    s_add_u32 s{S_RB64}, s{S_RB64}, s{S_T2}
    s_lshr_b32 s{S_T3}, s{S_T1}, 3
    s_and_b32 s{S_CB}, s{S_T0}, 1
    s_lshl_b32 s{S_CB}, s{S_CB}, 2
    s_add_u32 s{S_CB}, s{S_CB}, s{S_T3}
    s_mov_b32 s{S_ROT2}, s{S_ROT}
    s_lshl_b32 s{S_WOB_OFF}, s{S_WAVE}, 13
    s_lshl_b32 s{S_T0}, s{S_CB}, 7
    s_add_u32 s{S_WOB_OFF}, s{S_WOB_OFF}, s{S_T0}
    """)

def gate_dma(p):
    L = V_LANE
    p(f"""
    s_mov_b32 s{S_GATE+2}, 1024
    s_mov_b32 s{S_GATE+3}, 0x20000
    s_lshl_b32 s{S_T0}, s{S_ROT}, 3
    v_add_u32 v{V_C3}, s{S_T0}, v{L}
    v_and_b32 v{V_C3}, 63, v{V_C3}
    v_lshlrev_b32 v{V_C3}, 4, v{V_C3}
    s_mov_b32 m0, {GATE_L}
    s_nop 0
    """)
    p(f"buffer_load_dwordx4 v{V_C3}, s[{S_GATE}:{S_GATE+3}], 0 offen lds", tag="gate")

def wo_srds(p):
    p(f"""
    s_waitcnt lgkmcnt(0)
    s_mov_b32 s{S_GATE}, s6
    s_mov_b32 s{S_GATE+1}, s7
    s_mov_b32 s{S_GATE+2}, {512*1024}
    s_mov_b32 s{S_GATE+3}, 0x20000
    s_mov_b32 s6, {512*1024}
    s_mov_b32 s7, 0x20000
    """)

def dma_slice(p, q, isB):
    so = (q % 4) * SLOT
    p(f"""
    s_add_u32 s{S_T0}, s{S_ROT}, {q}
    s_and_b32 s{S_T0}, s{S_T0}, 7
    s_lshl_b32 s{S_T1}, s{S_T0}, 7
    s_mul_i32 s{S_T2}, s{S_T0}, {64*3072}
    s_add_u32 s{S_T3}, s{S_T1}, s{S_XB}
    s_add_u32 m0, s{S_MX}, {so}
    s_add_u32 s{S_T2}, s{S_T2}, s{S_WB}
    buffer_load_dwordx4 v{V_X0}, s[{S_X}:{S_X+3}], s{S_T3} offen lds
    buffer_load_dwordx4 v{V_X1}, s[{S_X}:{S_X+3}], s{S_T3} offen offset:1024 lds
    s_add_u32 m0, s{S_MW}, {so}
    s_nop 0
    buffer_load_dwordx4 v{V_W}, s[{S_W}:{S_W+3}], s{S_T2} offen lds
    buffer_load_dwordx4 v{V_W}, s[{S_W}:{S_W+3}], s{S_T2} offen offset:1024 lds
    """)
    if isB:
        p(f"""
        s_add_u32 s{S_T1}, s{S_T1}, s{S_HB}
        s_add_u32 m0, s{S_MH}, {so}
        s_mov_b64 exec, 0xffff
        buffer_load_dwordx4 v{V_H}, s[{S_X}:{S_X+3}], s{S_T1} offen lds
        s_mov_b64 exec, -1
        """)

def dma_wq(p, half):
    for pp in range(4 * half, 4 * half + 4):
        ldso = half * SLOT + ((pp >> 1) & 1) * 16384 + (pp & 1) * 1024
        p(f"""
        s_add_u32 s{S_T0}, s{S_ROT}, {pp}
        s_and_b32 s{S_T0}, s{S_T0}, 7
        s_mul_i32 s{S_T2}, s{S_T0}, {64*3072}
        s_add_u32 m0, s{S_MX}, {ldso}
        s_add_u32 s{S_T2}, s{S_T2}, s{S_QB}
        buffer_load_dwordx4 v{V_W}, s[{S_W}:{S_W+3}], s{S_T2} offen lds
        """)

V_WO = 5
def wo_voff(p):
    L, T = V_LANE, V_T
    p(f"""
    v_lshrrev_b32 v{T}, 3, v{L}
    v_lshrrev_b32 v{T+1}, 4, v{L}
    v_lshlrev_b32 v{T+1}, 1, v{T+1}
    v_and_b32 v{T+2}, 7, v{L}
    v_xor_b32 v{T+1}, v{T+1}, v{T+2}
    v_lshlrev_b32 v{T+1}, 4, v{T+1}
    v_lshl_add_u32 v{V_WO}, v{T}, 10, v{T+1}
    """)

def dma_wo(p, br):
    srd = S_GATE if br else S_WOA
    base = WOB_L if br else WOA_L
    for pos in range(8):
        p(f"""
        s_add_u32 s{S_T0}, s{S_ROT2}, {pos}
        s_and_b32 s{S_T0}, s{S_T0}, 7
        s_lshl_b32 s{S_T0}, s{S_T0}, 16
        s_lshl_b32 s{S_T1}, s{S_WAVE}, 10
        s_add_u32 m0, s{S_T1}, {base + pos * 8192}
        s_add_u32 s{S_T0}, s{S_T0}, s{S_WOB_OFF}
        buffer_load_dwordx4 v{V_WO}, s[{srd}:{srd+3}], s{S_T0} offen lds
        """)

def read_addr_setup(p, isB):
    L, T = V_LANE, V_T
    p(f"""
    v_and_b32 v{T}, 15, v{L}
    v_lshrrev_b32 v{T+1}, 4, v{L}
    v_lshrrev_b32 v{T+2}, 1, v{T}
    v_xor_b32 v{T+2}, v{T+2}, v{T+1}
    v_lshlrev_b32 v{T+2}, 4, v{T+2}
    v_lshl_add_u32 v{T+2}, v{T}, 7, v{T+2}
    s_lshl_b32 s{S_T0}, s{S_RG}, 12
    v_add_u32 v{V_XR[0][0]}, s{S_T0}, v{T+2}
    v_xor_b32 v{V_XR[0][1]}, 64, v{V_XR[0][0]}
    v_add_u32 v{V_XR[1][0]}, {2*SLOT}, v{V_XR[0][0]}
    v_add_u32 v{V_XR[1][1]}, {2*SLOT}, v{V_XR[0][1]}
    """)
    if isB:
        p(f"""
        v_add_u32 v{V_XH[0][0]}, {XH_OFF}, v{T+2}
        v_xor_b32 v{V_XH[0][1]}, 64, v{V_XH[0][0]}
        v_add_u32 v{V_XH[1][0]}, {2*SLOT}, v{V_XH[0][0]}
        v_add_u32 v{V_XH[1][1]}, {2*SLOT}, v{V_XH[0][1]}
        """)
    p(f"""
    v_lshrrev_b32 v{T+2}, 2, v{T}
    v_lshrrev_b32 v{T+3}, 1, v{T+2}
    v_and_b32 v{V_C0}, 1, v{T+1}
    v_lshl_or_b32 v{T+3}, v{V_C0}, 1, v{T+3}
    s_lshl_b32 s{S_T0}, s{S_HP}, 1
    v_xor_b32 v{T+3}, s{S_T0}, v{T+3}
    v_lshlrev_b32 v{T+3}, 5, v{T+3}
    v_lshl_add_u32 v{T+3}, v{T+2}, 7, v{T+3}
    v_lshl_add_u32 v{T+3}, v{T+1}, 11, v{T+3}
    v_and_b32 v{V_C0}, 3, v{L}
    v_lshl_add_u32 v{V_WR[0][0]}, v{V_C0}, 3, v{T+3}
    v_xor_b32 v{V_WR[0][1]}, 32, v{V_WR[0][0]}
    v_add_u32 v{V_WR[1][0]}, {2*SLOT}, v{V_WR[0][0]}
    v_add_u32 v{V_WR[1][1]}, {2*SLOT}, v{V_WR[0][1]}
    """)
    if isB:
        p(f"""
        s_and_b32 s{S_T0}, s{S_RG}, 1
        s_lshl_b32 s{S_T0}, s{S_T0}, 5
        s_lshr_b32 s{S_T1}, s{S_RG}, 1
        s_lshl_b32 s{S_T1}, s{S_T1}, 10
        v_xor_b32 v{V_WH[0]}, s{S_T0}, v{V_WR[0][0]}
        v_add_u32 v{V_WH[0]}, s{S_T1}, v{V_WH[0]}
        v_add_u32 v{V_WH[1]}, {2*SLOT}, v{V_WH[0]}
        """)

def s1_reads(t, isB):
    pos, ks = t >> 1, t & 1
    st = t & 1
    slot = pos % 4; hi = slot >> 1; so = (slot & 1) * SLOT
    r = []
    def wf(m, j):
        f = V_WF[st] + (m * 2 + j) * 4
        o = so + W_OFF + ks * 8192 + m * 1024
        return [f"ds_read_b64_tr_b16 {vr(f, 2)}, v{V_WR[hi][j]} offset:{o}",
                f"ds_read_b64_tr_b16 {vr(f+2, 2)}, v{V_WR[hi][j]} offset:{o + 512}"]
    def xf(b): return [f"ds_read_b128 {ar(xfr(t, b), 4)}, v{V_XR[hi][ks]} offset:{so + b * 2048}"]
    if "nox" in EXP: xf = lambda b: []
    if "now" in EXP: wf = lambda m, j: []
    r += xf(0) + wf(0, 0) + xf(1) + wf(0, 1) + wf(1, 0) + wf(1, 1)
    if isB:
        r.append(f"ds_read_b128 {vr(V_XHF[st], 4)}, v{V_XH[hi][ks]} offset:{so}")
        o = so + W_OFF + ks * 8192
        r.append(f"ds_read_b64_tr_b16 {vr(V_WHF[st], 2)}, v{V_WH[hi]} offset:{o}")
        r.append(f"ds_read_b64_tr_b16 {vr(V_WHF[st]+2, 2)}, v{V_WH[hi]} offset:{o + 512}")
    return r

def s1_mfmas(t, isB):
    st = t & 1
    first = (t == 0)
    r = []
    for m in range(2):
        for j in range(2):
            for b in range(2):
                d = acc(V_AK if m == 0 else V_AV, b, j)
                w = vr(V_WF[st] + (m * 2 + j) * 4, 4)
                x = ar(xfr(t, b), 4)
                c = "0" if first else vr(d, 4)
                r.append(mfma32(vr(d, 4), w, x, c) if (isB and m == 0) else mfma32(vr(d, 4), x, w, c))
    if isB:
        c = "0" if first else vr(V_AH, 4)
        r.append(mfma32(vr(V_AH, 4), vr(V_XHF[st], 4), vr(V_WHF[st], 4), c))
    return r

V_NONCE = 22
def nonce_load(p):
    p(f"v_mov_b32 v{V_T+3}, 0")
    p(f"global_load_dword v{V_NONCE}, v{V_T+3}, s[{S_P_DBG}:{S_P_DBG+1}] sc1")

def stage1(p, isB, early):
    p.curtag = "s0"; dma_slice(p, 0, isB)
    early(p)
    p.curtag = "s1"; dma_slice(p, 1, isB)
    p.curtag = "s2"; dma_slice(p, 2, isB)
    p.curtag = "?"
    p.vmwait("s0")
    p("s_barrier")
    if FINE: p.stamp()
    for l in s1_reads(0, isB): p(l)
    pend = []
    for t in range(16):
        pos = t >> 1
        if t & 1:
            npos = pos + 1
            if npos < 8:
                p.vmwait(f"s{npos}", "lgkmcnt(0)")
                p("s_barrier")
                if FINE: p.stamp()
            else:
                p("s_waitcnt lgkmcnt(0)")
                p("s_barrier")
            q = pos + 4 - 0
            q = pos + 3 + 1
        reads = s1_reads(t + 1, isB) if t + 1 < 16 else []
        rper = 2
        chunks = []
        if t & 1:
            q = pos + 4
            if q < 8:
                pend = [(f"s{q}", c) for c in split_vm(capture(dma_slice, q, isB))]
            elif q == 8:
                pend = [("wq0", c) for c in split_vm(capture(dma_wq, 0))]
            elif q == 9:
                pend = [("wq1", c) for c in split_vm(capture(dma_wq, 1))]
            else:
                pend = []
            h = (len(pend) + 1) // 2
            chunks, pend = pend[:h], pend[h:]
        else:
            if t == 0:
                chunks = [("s3", c) for c in split_vm(capture(dma_slice, 3, isB))]
            else:
                chunks, pend = pend, []
            if t == 6:
                chunks = chunks + [("nonce", capture(nonce_load))]
            p("s_waitcnt lgkmcnt(0)")
        if "nodma" in EXP and t > 0:
            chunks = [(tg, [l for l in c if not l.startswith("buffer_load")] + ["buffer_load_dword v24, v1, s[8:11], 0 offen"]) for tg, c in chunks[:0]]
            for q in range(4, 8):
                if f"s{q}" not in p.vm: p.vm.append(f"s{q}")
            for q in ("wq0", "wq1", "nonce"):
                if q not in p.vm: p.vm.append(q)
        block(p, s1_mfmas(t, isB), reads, chunks, rper)

def s2_reads(t):
    pos, ks = t >> 1, t & 1
    st = t & 1
    half = pos >> 2
    o = half * SLOT + ((pos >> 1) & 1) * 16384 + (pos & 1) * 1024 + ks * 8192
    r = []
    for j in range(2):
        f = V_WF[0] + st * 8 + j * 4
        r.append(f"ds_read_b64_tr_b16 {vr(f, 2)}, v{V_WR[0][j]} offset:{o}")
        r.append(f"ds_read_b64_tr_b16 {vr(f+2, 2)}, v{V_WR[0][j]} offset:{o + 512}")
    return r
def s2_mfmas(t):
    st = t & 1
    r = []
    for j in range(2):
        for b in range(2):
            d = acc(V_AQ, b, j)
            w = vr(V_WF[0] + st * 8 + j * 4, 4)
            r.append(mfma32(vr(d, 4), w, ar(xfr(t, b), 4), "0" if t == 0 else vr(d, 4)))
    return r

def stage2(p, extra):
    p.vmwait("wq0", "lgkmcnt(0)")
    p("s_barrier")
    for l in s2_reads(0): p(l)
    for t in range(16):
        if t == 7:
            p.vmwait("wq1", "lgkmcnt(0)")
            p("s_barrier")
        else:
            p("s_waitcnt lgkmcnt(0)")
        block(p, s2_mfmas(t), s2_reads(t + 1) if t < 15 else [], extra.get(t, []), 2)

def phi_batch(p, regs, tmp):
    n = len(regs)
    for i, r in enumerate(regs): p(f"v_mul_f32 v{tmp+i}, v{r}, v{V_C0}")
    for i, r in enumerate(regs): p(f"v_exp_f32_e64 v{tmp+i}, v{tmp+i} clamp")
    for i, r in enumerate(regs): p(f"v_add_f32_e64 v{r}, v{r}, abs(v{r})")
    for i, r in enumerate(regs): p(f"v_add_f32 v{tmp+i}, v{tmp+i}, v{V_C1}")
    for i, r in enumerate(regs): p(f"v_fma_f32 v{r}, v{r}, 0.5, v{tmp+i}")

def get_tag(p):
    lab = p.newlabel("NW"); ok = p.newlabel("NOK")
    p.vmwait("nonce")
    p(f"s_mov_b32 s{S_CNT}, 0")
    p.label(lab)
    p(f"v_readfirstlane_b32 s{S_TAG}, v{V_NONCE}")
    p(f"s_cmp_lg_u32 s{S_TAG}, 0")
    p(f"s_cbranch_scc1 {ok}")
    p(f"s_add_u32 s{S_CNT}, s{S_CNT}, 1")
    p(f"s_cmp_ge_u32 s{S_CNT}, {SPIN_LIMIT}")
    p(f"s_cbranch_scc1 {ok}")
    p(f"v_mov_b32 v{V_T+3}, 0")
    p.lines.append(f"global_load_dword v{V_NONCE}, v{V_T+3}, s[{S_P_DBG}:{S_P_DBG+1}] sc1")
    p("s_waitcnt vmcnt(0)")
    p(f"s_branch {lab}")
    p.label(ok)

def gather_loads(p, GB):
    for i in range(4):
        for j in range(2):
            r = GB + (i * 2 + j) * 4
            p(f"buffer_load_dwordx4 {vr(r, 4)}, v{V_C2}, s[{S_WS}:{S_WS+3}], s{S_G[i]} offen offset:{j*1024} sc1")

def path_A(p):
    L = V_LANE
    def early(p):
        p.curtag = "gate"; gate_dma(p); p.curtag = "?"
        prologue2(p)
        read_addr_setup(p, False)
        wo_srds(p)
    stage1(p, False, early)
    p.stamp()
    T = V_WF[0]
    p(f"v_mov_b32 v{V_C0}, 0x3fb8aa3b")
    p(f"v_mov_b32 v{V_C1}, 0x358637bd")
    get_tag(p)
    PK = 44; VV = 52; ONES = 60
    for j in range(2):
        for b in range(2):
            v0 = acc(V_AV, b, j)
            p(f"v_cvt_pk_bf16_f32 v{VV + j*4 + b*2}, v{v0}, v{v0+1}")
            p(f"v_cvt_pk_bf16_f32 v{VV + j*4 + b*2 + 1}, v{v0+2}, v{v0+3}")
    phi_batch(p, [V_AK + i for i in range(8)], T)
    phi_batch(p, [V_AK + 8 + i for i in range(8)], T + 8)
    for i in range(4): p(f"v_mov_b32 v{ONES+i}, 0x3f803f80")
    for j in range(2):
        for b in range(2):
            a0 = acc(V_AK, b, j)
            p(f"v_cvt_pk_bf16_f32 v{PK + j*4 + b*2}, v{a0}, v{a0+1}")
            p(f"v_cvt_pk_bf16_f32 v{PK + j*4 + b*2 + 1}, v{a0+2}, v{a0+3}")
    KVD = V_AK
    for j in range(2):
        p(mfma32(vr(KVD + j*4, 4), vr(PK + j*4, 4), vr(VV + j*4, 4), "0"))
        p(mfma32(vr(KVD + 8 + j*4, 4), vr(ONES, 4), vr(PK + j*4, 4), "0"))
    A0 = 64; A1 = 65
    p(f"""
    s_lshl_b32 s{S_T0}, s{S_HP}, 3
    s_add_u32 s{S_T0}, s{S_T0}, s{S_RG}
    s_lshl_b32 s{S_T1}, s{S_T0}, 10
    s_add_u32 s{S_T1}, s{S_T1}, {RED}
    v_lshl_add_u32 v{A0}, v{L}, 4, s{S_T1}
    s_lshl_b32 s{S_T1}, s{S_T0}, 6
    s_add_u32 s{S_T1}, s{S_T1}, {RED + 16384}
    v_and_b32 v{A1}, 15, v{L}
    v_lshl_add_u32 v{A1}, v{A1}, 2, s{S_T1}
    """)
    B0 = 66; B1 = 67
    p(f"""
    s_and_b32 s{S_T2}, s{S_RG}, 1
    s_lshl_b32 s{S_T3}, s{S_HP}, 1
    s_add_u32 s{S_T2}, s{S_T2}, s{S_T3}
    s_lshl_b32 s{S_T1}, s{S_T2}, 12
    s_add_u32 s{S_T1}, s{S_T1}, {RED}
    v_lshl_add_u32 v{B0}, v{L}, 4, s{S_T1}
    s_lshl_b32 s{S_T1}, s{S_T2}, 8
    s_add_u32 s{S_T1}, s{S_T1}, {RED + 16384}
    v_and_b32 v{B1}, 15, v{L}
    v_lshl_add_u32 v{B1}, v{B1}, 2, s{S_T1}
    s_lshl_b32 s{S_T0}, s{S_HG}, 4
    s_add_u32 s{S_T0}, s{S_T0}, s{S_RB}
    s_lshl_b32 s{S_T0}, s{S_T0}, 2
    s_add_u32 s{S_T0}, s{S_T0}, s{S_T2}
    s_lshl_b32 s{S_T0}, s{S_T0}, 10
    s_add_u32 s{S_G[0]}, s{S_T0}, {OFF_KV}
    v_lshlrev_b32 v{V_C2}, 4, v{L}
    """)
    for j in range(2):
        p(f"ds_write_b128 v{A0}, {vr(KVD + j*4, 4)} offset:{j * 4096}")
        p(f"ds_write_b32 v{A1}, v{KVD + 8 + j*4} offset:{j * 256}")
    p("s_waitcnt lgkmcnt(0)")
    p("s_barrier")
    R = 28
    for i in range(4):
        p(f"ds_read_b128 {vr(R + i*4, 4)}, v{B0} offset:{i * 1024}")
        p(f"ds_read_b32 v{R + 16 + i}, v{B1} offset:{i * 64}")
    p("s_waitcnt lgkmcnt(0)")
    for r in range(4):
        p(f"v_add_f32 v{R + r}, v{R + r}, v{R + 4 + r}")
        p(f"v_add_f32 v{R + 8 + r}, v{R + 8 + r}, v{R + 12 + r}")
    p(f"v_add_f32 v{R+16}, v{R+16}, v{R+17}")
    p(f"v_add_f32 v{R+18}, v{R+18}, v{R+19}")
    for r in range(4):
        p(f"v_add_f32 v{R + r}, v{R + r}, v{R + 8 + r}")
    G = 48
    p(f"""
    v_add_f32 v{G+2}, v{R+16}, v{R+18}
    v_mov_b32 v{G+3}, s{S_TAG}
    v_cvt_pk_bf16_f32 v{G}, v{R}, v{R+1}
    v_cvt_pk_bf16_f32 v{G+1}, v{R+2}, v{R+3}
    """)
    p(f"buffer_store_dwordx4 {vr(G, 4)}, v{V_C2}, s[{S_WS}:{S_WS+3}], s{S_G[0]} offen sc1", tag="pub")
    p.stamp()
    p(f"""
    s_lshl_b32 s{S_T0}, s{S_HG}, 4
    s_lshl_b32 s{S_T1}, s{S_RG}, 2
    s_add_u32 s{S_T0}, s{S_T0}, s{S_T1}
    s_lshl_b32 s{S_T0}, s{S_T0}, 2
    s_lshl_b32 s{S_T1}, s{S_HP}, 1
    s_add_u32 s{S_T0}, s{S_T0}, s{S_T1}
    s_lshl_b32 s{S_T0}, s{S_T0}, 10
    s_add_u32 s{S_G[0]}, s{S_T0}, {OFF_KV}
    s_add_u32 s{S_G[1]}, s{S_G[0]}, 4096
    s_add_u32 s{S_G[2]}, s{S_G[0]}, 8192
    s_add_u32 s{S_G[3]}, s{S_G[0]}, 12288
    """)
    wo_voff(p)
    GB = 76
    ex = {}
    wob = [("wob", c) for c in split_vm(capture(dma_wo, 1))]
    for i, c in enumerate(wob): ex.setdefault(1 + i, []).append(c)
    gl = [("gath", c) for c in split_vm(capture(gather_loads, GB))]
    for i, c in enumerate(gl): ex.setdefault(12 + i // 2, []).append(c)
    stage2(p, ex)
    p.stamp()
    p("s_barrier")
    woa = [("woa", c) for c in split_vm(capture(dma_wo, 0))]
    c = Cap()
    phi_batch(c, [V_AQ + i for i in range(8)], 28)
    phi_batch(c, [V_AQ + 8 + i for i in range(8)], 36)
    PQ = 44
    for b in range(2):
        for j in range(2):
            a0 = acc(V_AQ, b, j)
            c(f"v_cvt_pk_bf16_f32 v{PQ + (b*2+j)*2}, v{a0}, v{a0+1}")
            c(f"v_cvt_pk_bf16_f32 v{PQ + (b*2+j)*2 + 1}, v{a0+2}, v{a0+3}")
    block(p, c.lines, [], woa, 0)
    labg = p.newlabel("A_NOGATE")
    p(f"""
    s_lshr_b32 s{S_T0}, s{S_HG}, 1
    s_and_b32 s{S_T1}, s{S_HG}, 1
    s_lshl_b32 s{S_T1}, s{S_T1}, 2
    s_add_u32 s{S_T0}, s{S_T0}, s{S_T1}
    s_cmp_lg_u32 s{S_T0}, s{S_WAVE}
    s_cbranch_scc1 {labg}
    """)
    GW = 28; GA = 108
    p(f"""
    v_lshrrev_b32 v{V_T+2}, 4, v{L}
    v_lshlrev_b32 v{V_T+2}, 4, v{V_T+2}
    v_add_u32 v{V_T+2}, {GATE_L}, v{V_T+2}
    """)
    labb1 = p.newlabel("A_GB1"); labge = p.newlabel("A_GEND")
    p(f"s_cmp_eq_u32 s{S_HP}, 1")
    p(f"s_cbranch_scc1 {labb1}")
    for b in range(2):
        if b == 1: p.label(labb1)
        for tq in range(4):
            for u in range(4):
                p(f"ds_read_b128 {vr(GW + u*4, 4)}, v{V_T+2} offset:{(tq*4+u) * 64}")
            p("s_waitcnt lgkmcnt(0)")
            for u in range(4):
                t = tq * 4 + u
                p(mfma32(vr(GA, 4), vr(GW + u*4, 4), ar(xfr(t, b), 4), "0" if t == 0 else vr(GA, 4)))
        if b == 0: p(f"s_branch {labge}")
    p.label(labge)
    p(f"""
    v_mul_f32 v{GA+1}, v{GA}, v{V_C0}
    v_sub_f32 v{GA+1}, 0, v{GA+1}
    v_exp_f32 v{GA+1}, v{GA+1}
    v_add_f32 v{GA+1}, 1.0, v{GA+1}
    v_rcp_f32 v{GA+1}, v{GA+1}
    s_lshl_b32 s{S_T0}, s{S_RB}, 7
    s_lshl_b32 s{S_T1}, s{S_HG}, 4
    s_add_u32 s{S_T0}, s{S_T0}, s{S_T1}
    s_lshl_b32 s{S_T0}, s{S_T0}, 2
    s_add_u32 s{S_T0}, s{S_T0}, {OFF_G}
    v_lshlrev_b32 v{GA+2}, 2, v{L}
    s_mov_b64 exec, 0xffff
    """)
    p.lines.append(f"buffer_store_dword v{GA+1}, v{GA+2}, s[{S_WS}:{S_WS+3}], s{S_T0} offen sc1")
    p("s_mov_b64 exec, -1")
    p.label(labg)
    labp = p.newlabel("A_POLL"); labok = p.newlabel("A_GOT")
    p.vmwait("gath")
    p(f"s_mov_b32 s{S_CNT}, 0")
    p.label(labp)
    p(f"v_mov_b32 v{V_T+2}, s{S_TAG}")
    for k in range(8):
        p(f"v_xor_b32 v{28+k}, v{GB + k*4 + 3}, v{V_T+2}")
    p(f"v_or3_b32 v28, v28, v29, v30")
    p(f"v_or3_b32 v31, v31, v32, v33")
    p(f"v_or3_b32 v28, v28, v34, v35")
    p(f"v_or_b32 v28, v28, v31")
    p(f"v_cmp_ne_u32 vcc, 0, v28")
    p(f"s_cbranch_vccz {labok}")
    p(f"s_add_u32 s{S_CNT}, s{S_CNT}, 1")
    p(f"s_cmp_ge_u32 s{S_CNT}, {SPIN_LIMIT}")
    p(f"s_cbranch_scc1 {labok}")
    p("s_sleep 1")
    for l in capture(gather_loads, GB): p.lines.append(l)
    p("s_waitcnt vmcnt(0)")
    p(f"s_branch {labp}")
    p.label(labok)
    p.stamp()
    SK = 28
    for j in range(2):
        d = SK + j * 4
        r0 = GB + j * 4
        p(f"v_lshlrev_b32 v{d}, 16, v{r0}")
        p(f"v_and_b32 v{d+1}, 0xffff0000, v{r0}")
        p(f"v_lshlrev_b32 v{d+2}, 16, v{r0+1}")
        p(f"v_and_b32 v{d+3}, 0xffff0000, v{r0+1}")
    for i in range(1, 4):
        for j in range(2):
            r = GB + (i * 2 + j) * 4
            d = SK + j * 4
            t = 52 + j * 4
            p(f"v_lshlrev_b32 v{t}, 16, v{r}")
            p(f"v_and_b32 v{t+1}, 0xffff0000, v{r}")
            p(f"v_lshlrev_b32 v{t+2}, 16, v{r+1}")
            p(f"v_and_b32 v{t+3}, 0xffff0000, v{r+1}")
            for q in range(4): p(f"v_add_f32 v{d+q}, v{d+q}, v{t+q}")
    for j in range(2):
        p(f"v_add_f32 v{36+j}, v{GB + j*4 + 2}, v{GB + (2+j)*4 + 2}")
        p(f"v_add_f32 v{38+j}, v{GB + (4+j)*4 + 2}, v{GB + (6+j)*4 + 2}")
        p(f"v_add_f32 v{36+j}, v{36+j}, v{38+j}")
    for j in range(2):
        p(f"ds_write_b128 v{A0}, {vr(SK + j*4, 4)} offset:{j * 4096}")
        p(f"ds_write_b32 v{A1}, v{36 + j} offset:{j * 256}")
    p(f"""
    s_lshl_b32 s{S_T1}, s{S_HP}, 13
    s_add_u32 s{S_T1}, s{S_T1}, {RED}
    v_lshl_add_u32 v{B0}, v{L}, 4, s{S_T1}
    s_lshl_b32 s{S_T1}, s{S_HP}, 9
    s_add_u32 s{S_T1}, s{S_T1}, {RED + 16384}
    v_lshrrev_b32 v{B1}, 4, v{L}
    v_lshl_add_u32 v{B1}, v{B1}, 4, s{S_T1}
    s_waitcnt lgkmcnt(0)
    s_barrier
    """)
    KB = 76
    for j in range(2):
        for i in range(4):
            p(f"ds_read_b128 {vr(KB + (j*4+i)*4, 4)}, v{B0} offset:{j*4096 + i*1024}")
    ZB = 108
    for i in range(4):
        p(f"ds_read_b128 {vr(ZB + i*4, 4)}, v{B1} offset:{i*64}")
    ZB2 = 28
    for i in range(4):
        p(f"ds_read_b128 {vr(ZB2 + i*4, 4)}, v{B1} offset:{256 + i*64}")
    p("s_waitcnt lgkmcnt(8)")
    KT = 52
    for j in range(2):
        b0 = KB + j * 16
        for q in range(4):
            p(f"v_add_f32 v{b0+q}, v{b0+q}, v{b0+4+q}")
            p(f"v_add_f32 v{b0+8+q}, v{b0+8+q}, v{b0+12+q}")
        for q in range(4): p(f"v_add_f32 v{b0+q}, v{b0+q}, v{b0+8+q}")
        p(f"v_cvt_pk_bf16_f32 v{KT + j*2}, v{b0}, v{b0+1}")
        p(f"v_cvt_pk_bf16_f32 v{KT + j*2 + 1}, v{b0+2}, v{b0+3}")
    p("s_waitcnt lgkmcnt(0)")
    for j, b0 in ((0, ZB), (1, ZB2)):
        for q in range(4):
            p(f"v_add_f32 v{b0+q}, v{b0+q}, v{b0+4+q}")
            p(f"v_add_f32 v{b0+8+q}, v{b0+8+q}, v{b0+12+q}")
        for q in range(4): p(f"v_add_f32 v{b0+q}, v{b0+q}, v{b0+8+q}")
        p(f"v_cvt_pk_bf16_f32 v{KT + 4 + j*2}, v{b0}, v{b0+1}")
        p(f"v_cvt_pk_bf16_f32 v{KT + 4 + j*2 + 1}, v{b0+2}, v{b0+3}")
    NUM = 76; DEN = 92
    for b in range(2):
        for j in range(2):
            pq = vr(PQ + (b*2+j)*2, 2)
            p(mfma16(vr(acc(DEN, b, j), 4), vr(KT + 4 + j*2, 2), pq, "0"))
    for b in range(2):
        for j in range(2):
            pq = vr(PQ + (b*2+j)*2, 2)
            p(mfma16(vr(acc(NUM, b, j), 4), vr(KT + j*2, 2), pq, "0"))
    ofrag_addr(p, 0)
    for u in range(4): p(f"v_add_f32 v{DEN + u*4}, v{DEN + u*4}, v{V_C1}")
    for u in range(4): p(f"v_rcp_f32 v{DEN + u*4}, v{DEN + u*4}")
    OF = 28
    for b in range(2):
        for j in range(2):
            d = acc(DEN, b, j); n = acc(NUM, b, j)
            for q in range(4): p(f"v_mul_f32 v{n+q}, v{n+q}, v{d}")
            p(f"v_cvt_pk_bf16_f32 v{OF + b*4 + j*2}, v{n}, v{n+1}")
            p(f"v_cvt_pk_bf16_f32 v{OF + b*4 + j*2 + 1}, v{n+2}, v{n+3}")
        ofrag_store(p, OF, b)
    p.stamp()

def ofrag_addr(p, branch):
    p(f"""
    s_lshl_b32 s{S_T0}, s{S_RB}, 3
    s_lshl_b32 s{S_T1}, s{S_RG}, 1
    s_add_u32 s{S_T0}, s{S_T0}, s{S_T1}
    s_lshl_b32 s{S_T0}, s{S_T0}, 5
    s_lshl_b32 s{S_T1}, s{S_HG}, 1
    s_add_u32 s{S_T0}, s{S_T0}, s{S_T1}
    s_add_u32 s{S_T0}, s{S_T0}, s{S_HP}
    s_add_u32 s{S_T0}, s{S_T0}, {branch * 16}
    s_lshl_b32 s{S_T0}, s{S_T0}, 10
    s_add_u32 s{S_G[0]}, s{S_T0}, {OFF_O}
    s_add_u32 s{S_G[1]}, s{S_G[0]}, {32 * 1024}
    v_lshlrev_b32 v{V_T}, 4, v{V_LANE}
    """)
def ofrag_store(p, OF, b):
    p(f"buffer_store_dwordx4 {vr(OF + b*4, 4)}, v{V_T}, s[{S_WS}:{S_WS+3}], s{S_G[b]} offen sc1", tag="ost")

def path_B(p):
    L = V_LANE
    def early(p):
        prologue2(p)
        read_addr_setup(p, True)
        wo_srds(p)
    stage1(p, True, early)
    p.stamp()
    KT = 44; VF = 52; KP = 64; HT = 68
    for j in range(2):
        for b in range(2):
            a0 = acc(V_AK, b, j); v0 = acc(V_AV, b, j)
            p(f"v_cvt_pk_bf16_f32 v{KT + (j*2+b)*2}, v{a0}, v{a0+1}")
            p(f"v_cvt_pk_bf16_f32 v{KT + (j*2+b)*2 + 1}, v{a0+2}, v{a0+3}")
            p(f"v_cvt_pk_bf16_f32 v{VF + j*6 + 2 + b*2}, v{v0}, v{v0+1}")
            p(f"v_cvt_pk_bf16_f32 v{VF + j*6 + 2 + b*2 + 1}, v{v0+2}, v{v0+3}")
    p(f"v_cvt_pk_bf16_f32 v{HT}, v{V_AH}, v{V_AH+1}")
    p(f"v_cvt_pk_bf16_f32 v{HT+1}, v{V_AH+2}, v{V_AH+3}")
    A0 = V_C3
    p(f"""
    s_lshl_b32 s{S_T0}, s{S_HP}, 2
    s_add_u32 s{S_T0}, s{S_T0}, s{S_RG}
    s_lshl_b32 s{S_T0}, s{S_T0}, 11
    s_add_u32 s{S_T0}, s{S_T0}, {RED}
    v_lshl_add_u32 v{A0}, v{L}, 3, s{S_T0}
    """)
    lab = p.newlabel("B_NOW")
    p(f"s_cmp_eq_u32 s{S_RG}, 3")
    p(f"s_cbranch_scc1 {lab}")
    for j in range(2):
        p(f"ds_write_b64 v{A0}, {vr(KT + (j*2+1)*2, 2)} offset:{2048 + j*1024}")
        p(f"ds_write_b64 v{A0}, {vr(VF + j*6 + 4, 2)} offset:{2048 + j*1024 + 512}")
    p.label(lab)
    labv = p.newlabel("B_HV"); labd = p.newlabel("B_HD")
    T0, T1, T2, T3 = V_T, V_T + 1, V_T + 2, V_T + 3
    p(f"""
    s_lshl_b32 s{S_T0}, s{S_HP}, 13
    s_and_b32 s{S_T1}, s{S_RG}, 1
    s_lshl_b32 s{S_T1}, s{S_T1}, 10
    s_add_u32 s{S_T0}, s{S_T0}, s{S_T1}
    s_add_u32 s{S_T0}, s{S_T0}, {RED}
    s_cmp_ge_u32 s{S_RG}, 2
    s_cbranch_scc1 {labv}
    v_and_b32 v{T1}, 15, v{L}
    v_lshrrev_b32 v{T2}, 2, v{T1}
    v_lshlrev_b32 v{T2}, 7, v{T2}
    v_lshrrev_b32 v{T3}, 4, v{L}
    v_lshl_add_u32 v{T2}, v{T3}, 5, v{T2}
    v_and_b32 v{T1}, 3, v{T1}
    v_lshl_add_u32 v{T2}, v{T1}, 1, v{T2}
    v_add_u32 v{T2}, s{S_T0}, v{T2}
    ds_write_b16 v{T2}, v{HT} offset:0
    ds_write_b16_d16_hi v{T2}, v{HT} offset:8
    ds_write_b16 v{T2}, v{HT+1} offset:16
    ds_write_b16_d16_hi v{T2}, v{HT+1} offset:24
    s_branch {labd}
    """)
    p.label(labv)
    p(f"""
    v_lshl_add_u32 v{T2}, v{L}, 3, s{S_T0}
    ds_write_b64 v{T2}, {vr(HT, 2)} offset:512
    """)
    p.label(labd)
    get_tag_late = True
    wo_voff(p)
    ex = {}
    wob = [("wob", c) for c in split_vm(capture(dma_wo, 1))]
    for i, c in enumerate(wob): ex.setdefault(1 + i, []).append(c)
    BO = 76; BP = 80; BP0 = 84
    c = Cap()
    c(f"""
    v_and_b32 v{T0}, 15, v{L}
    v_lshrrev_b32 v{T1}, 4, v{L}
    v_lshlrev_b32 v{T1}, 2, v{T1}
    v_sub_u32 v{T0}, v{T0}, v{T1}
    v_mov_b32 v{T3}, 0xcf6e6b28
    s_or_b32 s{S_T0}, s{S_RB}, s{S_RG}
    s_cmp_eq_u32 s{S_T0}, 0
    s_cselect_b64 s[{S_M2}:{S_M2+1}], 0, -1
    """)
    for r in range(4):
        c(f"""
        v_subrev_u32 v{T1}, {r}, v{T0}
        v_and_b32 v{T2}, 1, v{T1}
        v_cmp_eq_u32 s[{S_M0}:{S_M0+1}], 0, v{T2}
        v_cmp_le_i32 s[{S_M1}:{S_M1+1}], 0, v{T1}
        s_and_b64 s[{S_M1}:{S_M1+1}], s[{S_M1}:{S_M1+1}], s[{S_M0}:{S_M0+1}]
        v_cndmask_b32 v{BO+r}, v{T3}, 0, s[{S_M1}:{S_M1+1}]
        v_cmp_ge_i32 s[{S_M1}:{S_M1+1}], -2, v{T1}
        s_and_b64 s[{S_M1}:{S_M1+1}], s[{S_M1}:{S_M1+1}], s[{S_M0}:{S_M0+1}]
        v_cndmask_b32 v{BP+r}, v{T3}, 0, s[{S_M1}:{S_M1+1}]
        s_and_b64 s[{S_M1}:{S_M1+1}], s[{S_M1}:{S_M1+1}], s[{S_M2}:{S_M2+1}]
        v_cndmask_b32 v{BP0+r}, v{T3}, 0, s[{S_M1}:{S_M1+1}]
        """)
    ONES = 88
    c(f"v_mov_b32 v{V_C0}, 0x3eb8aa3b")
    for i in range(4): c(f"v_mov_b32 v{ONES+i}, 0x3f803f80")
    for l in c.lines: p(l)
    stage2(p, ex)
    p.stamp()
    p("s_barrier")
    for j in range(2):
        p(f"ds_read_b64 {vr(KP + j*2, 2)}, v{A0} offset:{j*1024}")
        p(f"ds_read_b64 {vr(VF + j*6, 2)}, v{A0} offset:{j*1024 + 512}")
    QT = 28
    for b in range(2):
        for j in range(2):
            a0 = acc(V_AQ, b, j)
            p(f"v_cvt_pk_bf16_f32 v{QT + (b*2+j)*2}, v{a0}, v{a0+1}")
            p(f"v_cvt_pk_bf16_f32 v{QT + (b*2+j)*2 + 1}, v{a0+2}, v{a0+3}")
    p("s_waitcnt lgkmcnt(0)")
    SP = 92; SO = 108
    for b in range(2):
        for j in range(2):
            u = b * 2 + j
            q = vr(QT + u * 2, 2)
            kprev = vr(KP + j*2, 2) if b == 0 else vr(KT + (j*2+0)*2, 2)
            kown = vr(KT + (j*2+b)*2, 2)
            p(mfma16(vr(SP + u*4, 4), kprev, q, vr(BP0 if b == 0 else BP, 4)))
            p(mfma16(vr(SO + u*4, 4), kown, q, vr(BO, 4)))
    woa = [("woa", c) for c in split_vm(capture(dma_wo, 0))]
    c = Cap()
    MX = 36
    for stp in range(4):
        for u in range(4):
            a = SP + u*4; o = SO + u*4
            if stp == 0: c(f"v_max3_f32 v{MX+u}, v{a}, v{a+1}, v{a+2}")
            if stp == 1: c(f"v_max3_f32 v{MX+u}, v{MX+u}, v{a+3}, v{o}")
            if stp == 2: c(f"v_max3_f32 v{MX+u}, v{MX+u}, v{o+1}, v{o+2}")
            if stp == 3: c(f"v_max_f32 v{MX+u}, v{MX+u}, v{o+3}")
    for sw in ("v_permlane32_swap_b32", "v_permlane16_swap_b32"):
        for u in range(4): c(f"v_mov_b32 v{MX+4+u}, v{MX+u}")
        for u in range(4): c(f"{sw} v{MX+u}, v{MX+4+u}")
        for u in range(4): c(f"v_max_f32 v{MX+u}, v{MX+u}, v{MX+4+u}")
    for u in range(4): c(f"v_mul_f32 v{MX+u}, v{MX+u}, v{V_C0}")
    for u in range(4):
        for base in (SP, SO):
            for r in range(4):
                x = base + u*4 + r
                c(f"v_fma_f32 v{x}, v{x}, v{V_C0}, -v{MX+u}")
    for u in range(4):
        for base in (SP, SO):
            for r in range(4):
                x = base + u*4 + r
                c(f"v_exp_f32 v{x}, v{x}")
    PF = 68
    for u in range(4):
        a = SP + u*4; o = SO + u*4
        c(f"v_cvt_pk_bf16_f32 v{PF + u*4}, v{a}, v{a+1}")
        c(f"v_cvt_pk_bf16_f32 v{PF + u*4 + 1}, v{a+2}, v{a+3}")
        c(f"v_cvt_pk_bf16_f32 v{PF + u*4 + 2}, v{o}, v{o+1}")
        c(f"v_cvt_pk_bf16_f32 v{PF + u*4 + 3}, v{o+2}, v{o+3}")
    block(p, c.lines, [], woa, 0)
    for b in range(2):
        for j in range(2):
            u = b * 2 + j
            p(mfma32(vr(SO + u*4, 4), vr(ONES, 4), vr(PF + u*4, 4), "0"))
    for b in range(2):
        for j in range(2):
            u = b * 2 + j
            p(mfma32(vr(SP + u*4, 4), vr(VF + j*6 + b*2, 4), vr(PF + u*4, 4), "0"))
    ofrag_addr(p, 1)
    for u in range(4): p(f"v_rcp_f32 v{SO + u*4}, v{SO + u*4}")
    OF = 28
    for b in range(2):
        for j in range(2):
            u = b * 2 + j
            n = SP + u*4
            for q in range(4): p(f"v_mul_f32 v{n+q}, v{n+q}, v{SO + u*4}")
            p(f"v_cvt_pk_bf16_f32 v{OF + b*4 + j*2}, v{n}, v{n+1}")
            p(f"v_cvt_pk_bf16_f32 v{OF + b*4 + j*2 + 1}, v{n+2}, v{n+3}")
        ofrag_store(p, OF, b)
    get_tag(p)
    p.stamp()

def phase2(p):
    L = V_LANE; T = V_T
    RBK = S_RG; BR2 = S_HP
    VA = [6, 7, 8, 9]; VO = 10; VG = 11; VFL = 12
    OFR = 76 - 64
    WF = [28, 44]; ACC = 60
    p(f"""
    v_lshrrev_b32 v{T}, 4, v{L}
    v_bfe_u32 v{T+1}, v{L}, 2, 2
    v_lshrrev_b32 v{T+2}, 1, v{T+1}
    v_lshl_add_u32 v{T+2}, v{T}, 1, v{T+2}
    v_and_b32 v{T+2}, 3, v{T+2}
    v_lshlrev_b32 v{T+2}, 5, v{T+2}
    v_lshl_add_u32 v{T+3}, v{T}, 2, v{T+1}
    v_lshl_add_u32 v{T+2}, v{T+3}, 7, v{T+2}
    v_and_b32 v{T+3}, 3, v{L}
    v_lshl_add_u32 v{T+2}, v{T+3}, 3, v{T+2}
    s_mul_i32 s{S_T0}, s{BR2}, {WOB_L}
    v_add_u32 v{VA[0]}, s{S_T0}, v{T+2}
    v_xor_b32 v{VA[1]}, 32, v{VA[0]}
    v_xor_b32 v{VA[2]}, 64, v{VA[0]}
    v_xor_b32 v{VA[3]}, 96, v{VA[0]}
    v_lshlrev_b32 v{VO}, 4, v{L}
    v_and_b32 v{VFL}, 7, v{L}
    v_lshlrev_b32 v{VFL}, 2, v{VFL}
    """)
    p(f"""
    s_lshl_b32 s{S_T0}, s{S_RB}, 7
    s_lshl_b32 s{S_T1}, s{S_BR}, 5
    s_add_u32 s{S_T0}, s{S_T0}, s{S_T1}
    s_lshl_b32 s{S_T1}, s{S_HG}, 2
    s_add_u32 s{S_G[2]}, s{S_T0}, s{S_T1}
    s_lshr_b32 s{S_T0}, s{S_RB64}, 1
    s_lshl_b32 s{S_T0}, s{S_T0}, 7
    s_lshl_b32 s{S_T1}, s{BR2}, 5
    s_add_u32 s{S_G[3]}, s{S_T0}, s{S_T1}
    s_lshl_b32 s{S_G[0]}, s{S_RB64}, 2
    s_add_u32 s{S_G[0]}, s{S_G[0]}, s{RBK}
    s_lshl_b32 s{S_G[1]}, s{S_G[0]}, 6
    s_lshl_b32 s{S_G[0]}, s{S_G[0]}, 5
    s_lshl_b32 s{S_T0}, s{BR2}, 4
    s_add_u32 s{S_G[0]}, s{S_G[0]}, s{S_T0}
    s_lshl_b32 s{S_G[0]}, s{S_G[0]}, 10
    s_add_u32 s{S_G[0]}, s{S_G[0]}, {OFF_O}
    s_waitcnt vmcnt(0)
    s_barrier
    """)
    labf = p.newlabel("NOFLAG")
    p(f"""
    s_cmp_lg_u32 s{S_WAVE}, 0
    s_cbranch_scc1 {labf}
    v_mov_b32 v{T}, s{S_TAG}
    v_mov_b32 v{T+1}, 0
    s_mov_b64 exec, 1
    buffer_store_dword v{T}, v{T+1}, s[{S_WS}:{S_WS+3}], s{S_G[2]} offen offset:{OFF_FL} sc1
    s_mov_b64 exec, -1
    """)
    p.label(labf)
    p.stamp()
    def reads(t):
        pos, ks = t >> 1, t & 1
        st = t & 1
        r = []
        for c4 in range(4):
            f = WF[st] + c4 * 4
            o = pos * 8192 + ks * 4096
            r.append(f"ds_read_b64_tr_b16 {vr(f, 2)}, v{VA[c4]} offset:{o}")
            r.append(f"ds_read_b64_tr_b16 {vr(f+2, 2)}, v{VA[c4]} offset:{o + 2048}")
        return r
    def mf(t):
        st = t & 1
        return [mfma32(vr(ACC + c4*4, 4), vr(WF[st] + c4*4, 4), ar(t*4, 4), "0" if t == 0 else vr(ACC + c4*4, 4)) for c4 in range(4)]
    for l in reads(0): p(l)
    labp = p.newlabel("P2"); labok = p.newlabel("P2OK")
    p(f"s_mov_b32 s{S_CNT}, 0")
    p(f"v_mov_b32 v{T+2}, s{S_TAG}")
    p.label(labp)
    p(f"buffer_load_dword v{T+3}, v{VFL}, s[{S_WS}:{S_WS+3}], s{S_G[3]} offen offset:{OFF_FL} sc1")
    p("s_waitcnt vmcnt(0)")
    p(f"v_cmp_ne_u32 vcc, v{T+3}, v{T+2}")
    p(f"s_cbranch_vccz {labok}")
    p(f"s_add_u32 s{S_CNT}, s{S_CNT}, 1")
    p(f"s_cmp_ge_u32 s{S_CNT}, {SPIN_LIMIT}")
    p(f"s_cbranch_scc1 {labok}")
    p("s_sleep 1")
    p(f"s_branch {labp}")
    p.label(labok)
    p.stamp()
    p.vm = []
    p.curtag = "g"
    p(f"""
    v_and_b32 v{T}, 15, v{L}
    v_lshlrev_b32 v{T}, 2, v{T}
    s_add_u32 s{S_T1}, s{S_G[1]}, {OFF_G}
    buffer_load_dword v{VG}, v{T}, s[{S_WS}:{S_WS+3}], s{S_T1} offen sc1
    """)
    for pos in range(8):
        p.curtag = f"o{pos}"
        p(f"""
        s_add_u32 s{S_T0}, s{S_ROT2}, {pos}
        s_and_b32 s{S_T0}, s{S_T0}, 7
        s_lshl_b32 s{S_T0}, s{S_T0}, 11
        s_add_u32 s{S_T0}, s{S_T0}, s{S_G[0]}
        buffer_load_dwordx4 {ar(2*pos*4, 4)}, v{VO}, s[{S_WS}:{S_WS+3}], s{S_T0} offen sc1
        buffer_load_dwordx4 {ar((2*pos+1)*4, 4)}, v{VO}, s[{S_WS}:{S_WS+3}], s{S_T0} offen offset:1024 sc1
        """)
    for t in range(16):
        if (t & 1) == 0:
            p.vmwait(f"o{t>>1}", "lgkmcnt(0)")
        else:
            p("s_waitcnt lgkmcnt(0)")
        block(p, mf(t), reads(t + 1) if t < 15 else [], [], 2)
    p.stamp()
    lab = p.newlabel("P2_A")
    p(f"""
    s_lshl_b32 s{S_T0}, s{RBK}, 12
    s_add_u32 s{S_T0}, s{S_T0}, {CMB_L}
    v_lshl_add_u32 v{T}, v{L}, 4, s{S_T0}
    s_cmp_eq_u32 s{BR2}, 0
    s_cbranch_scc1 {lab}
    """)
    for c4 in range(4):
        p(f"ds_write_b128 v{T}, {vr(ACC + c4*4, 4)} offset:{c4*1024}")
    p("s_waitcnt lgkmcnt(0)")
    p("s_barrier")
    if DEBUG_STAMPS:
        p("s_branch L_FLUSH")
    else:
        p("s_endpgm")
    p.label(lab)
    p(f"""
    v_and_b32 v{T+1}, 15, v{L}
    v_lshlrev_b32 v{T+1}, 10, v{T+1}
    v_lshrrev_b32 v{T+2}, 4, v{L}
    v_lshl_add_u32 v{T+1}, v{T+2}, 3, v{T+1}
    s_lshl_b32 s{S_T0}, s{S_CB}, 7
    s_lshl_b32 s{S_T1}, s{S_G[1]}, 8
    s_add_u32 s{S_T0}, s{S_T0}, s{S_T1}
    v_sub_f32 v{T+3}, 1.0, v{VG}
    s_barrier
    """)
    for c4 in range(4):
        p(f"ds_read_b128 {vr(WF[0] + c4*4, 4)}, v{T} offset:{c4*1024}")
    for i in range(16): p(f"v_mul_f32 v{ACC+i}, v{ACC+i}, v{VG}")
    p("s_waitcnt lgkmcnt(0)")
    for c4 in range(4):
        for q in range(4):
            p(f"v_fma_f32 v{ACC + c4*4 + q}, v{WF[0] + c4*4 + q}, v{T+3}, v{ACC + c4*4 + q}")
        p(f"v_cvt_pk_bf16_f32 v{44 + c4*2}, v{ACC + c4*4}, v{ACC + c4*4 + 1}")
        p(f"v_cvt_pk_bf16_f32 v{44 + c4*2 + 1}, v{ACC + c4*4 + 2}, v{ACC + c4*4 + 3}")
        p(f"buffer_store_dwordx2 {vr(44 + c4*2, 2)}, v{T+1}, s[{S_OUT}:{S_OUT+3}], s{S_T0} offen offset:{c4*32}")
    p("s_waitcnt vmcnt(0)")

def stamp_flush(p, n):
    if not DEBUG_STAMPS: return
    lab = p.newlabel("ST")
    p.label("L_FLUSH")
    p(f"{'s_memtime' if CYC else 's_memrealtime'} s[98:99]")
    p("s_waitcnt lgkmcnt(0)")
    p("v_cmp_eq_u32 vcc, 0, v0")
    p("s_and_saveexec_b64 s[96:97], vcc")
    p(f"s_cbranch_execz {lab}")
    p(f"s_lshl_b32 s100, s2, 6")
    p(f"s_add_u32 s100, s100, {OFF_ST}")
    p("v_mov_b32 v2, s100")
    for i in range(n):
        p(f"v_mov_b32 v5, s{STAMP_BASE + 2*i}")
        p(f"global_store_dword v2, v5, s[{S_P_WS}:{S_P_WS+1}] offset:{4*i}")
        p("s_nop 1")
    p(f"v_mov_b32 v5, s98")
    p(f"global_store_dword v2, v5, s[{S_P_WS}:{S_P_WS+1}] offset:60")
    p.label(lab)
    p("s_mov_b64 exec, -1")
    p("s_waitcnt vmcnt(0)")

def gen():
    p = K()
    prologue(p)
    n0 = p.nst
    p(f"s_cmp_eq_u32 s{S_BR}, 1")
    p("s_cbranch_scc1 L_B")
    path_A(p)
    nA = p.nst
    p("s_branch L_P2")
    p.label("L_B")
    p.vm = []; p.nst = n0
    path_B(p)
    p.nst = max(p.nst, nA)
    p.label("L_P2")
    phase2(p)
    stamp_flush(p, p.nst)
    p.label("L_END")
    p("s_endpgm")
    return p

HDR = open("gated_mix__linear_attn_block__sliding_local_dilated__prompt.s.ref").read().split("; Override launch")[0]

def main(outp):
    body, n = gen().text()
    print("hazard pads:", n, file=sys.stderr)
    s = HDR
    s += f"; @launch grid=(256,1,1) block=(512,1,1) lds={LDS_BYTES}\n"
    s += '.amdgcn_target "amdgcn-amd-amdhsa--gfx950"\n.text\n'
    s += f".globl {NAME}\n.p2align 8\n.type {NAME},@function\n{NAME}:\n{body}"
    s += '.section .rodata,"a"\n.p2align 6\n'
    s += f""".amdhsa_kernel {NAME}
  .amdhsa_next_free_vgpr 256
  .amdhsa_next_free_sgpr {102 if DEBUG_STAMPS else 72}
  .amdhsa_accum_offset 128
  .amdhsa_group_segment_fixed_size 0
  .amdhsa_kernarg_size 80
  .amdhsa_user_sgpr_count 2
  .amdhsa_user_sgpr_kernarg_segment_ptr 1
  .amdhsa_system_sgpr_workgroup_id_x 1
  .amdhsa_float_denorm_mode_32 3
.end_amdhsa_kernel
"""
    open(outp, "w").write(s)

if __name__ == "__main__":
    if "--stamps" in sys.argv: DEBUG_STAMPS = True
    if "--fine" in sys.argv: FINE = True
    if "--cyc" in sys.argv: CYC = True
    for a in sys.argv:
        if a.startswith("--exp="): EXP = a[6:]
    main(sys.argv[1])
```

```python
import sys
from fw import *

NAME = "gated_mix__linear_attn_block__sliding_local_dilated__prompt_kernel"
OFF_FL = 0
OFF_G = 4096
OFF_KV = 65536
OFF_O = 1 << 20
OFF_ST = 8 << 20
WS_BYTES = 268435456

SLOT = 34816
XH_OFF = 16384
W_OFF = 18432
MISC = 4 * SLOT
GATE_L = MISC
RED = MISC + 1024
WOB_L = 73728
WOA_L = 0
CMB_L = 139264
LDS_BYTES = 163840
SPIN_LIMIT = 1 << 14

DEBUG_STAMPS = False
FINE = False
EXP = ""
CYC = False
DBGOUT = False
STAMP_BASE = 66

class Cap:
    def __init__(self): self.lines = []
    def __call__(self, s):
        for l in s.strip("\n").split("\n"):
            l = l.strip()
            if l: self.lines.append(l)
def capture(fn, *a, **k):
    c = Cap(); fn(c, *a, **k); return c.lines
def split_vm(lines):
    chunks = []; cur = []
    for l in lines:
        if l.startswith("s_mov_b64 exec, -1") and chunks and not cur:
            chunks[-1].append(l); continue
        cur.append(l)
        if l.startswith(("buffer_load", "global_load", "buffer_store")):
            chunks.append(cur); cur = []
    assert not cur, cur
    return chunks

class K(Prog):
    def __init__(self):
        super().__init__()
        self.vm = []
        self.nst = 0
    def __call__(self, s, tag=None):
        for l in s.strip("\n").split("\n"):
            l = l.strip()
            if not l: continue
            self.lines.append(l)
            if l.startswith(("buffer_load", "buffer_store", "global_load", "global_store", "global_atomic", "buffer_atomic")):
                self.vm.append(tag or self.curtag)
    curtag = "?"
    def vmwait(self, tag, extra=""):
        idx = max(i for i, t in enumerate(self.vm) if t == tag)
        n = len(self.vm) - 1 - idx
        assert n <= 63
        self(f"s_waitcnt vmcnt({n}) {extra}".strip())
    def emit_chunk(self, c, tag):
        old = self.curtag; self.curtag = tag
        for l in c: self(l)
        self.curtag = old
    def stamp(self):
        if not DEBUG_STAMPS: return
        if self.nst >= 15: return
        i = self.nst; self.nst += 1
        self(f"{'s_memtime' if CYC else 's_memrealtime'} s[{STAMP_BASE + 2*i}:{STAMP_BASE + 2*i + 1}]")
        self("s_waitcnt lgkmcnt(0)")

def block(p, mfmas, reads, chunks=(), rper=2):
    n = len(mfmas)
    ri = 0
    m = len(chunks)
    cpos = {}
    for i in range(m):
        k = min(n - 1, max(0, (n * (i + 1)) // (m + 1)))
        cpos.setdefault(k, []).append(chunks[i])
    for i, l in enumerate(mfmas):
        p(l)
        for _ in range(rper):
            if ri < len(reads):
                p(reads[ri]); ri += 1
        for tag, c in cpos.get(i, []):
            p.emit_chunk(c, tag)
    while ri < len(reads):
        p(reads[ri]); ri += 1
    if n == 0:
        for tag, c in chunks: p.emit_chunk(c, tag)

def mfma32(d, a, b, c): return f"v_mfma_f32_16x16x32_bf16 {d}, {a}, {b}, {c}"
def mfma16(d, a, b, c): return f"v_mfma_f32_16x16x16_bf16 {d}, {a}, {b}, {c}"

V_LANE = 1
V_X0, V_X1, V_W, V_H = 2, 3, 4, 5
V_XR = [[6, 7], [8, 9]]
V_WR = [[10, 11], [12, 13]]
V_XH = [[14, 15], [16, 17]]
V_WH = [18, 19]
V_C0, V_C1, V_C2, V_C3 = 20, 21, 22, 23
V_T = 24
V_WF = [28, 44]
V_XHF = [60, 64]
V_WHF = [68, 72]
V_AK = 76; V_AV = 92; V_AQ = 108; V_AH = 124
def acc(base, b, j): return base + (b * 2 + j) * 4
def xfr(t, b): return (t * 2 + b) * 4

S_X = 8; S_W = 12; S_WS = 16; S_GATE = 20
S_WAVE = 24; S_RB = 25; S_HG = 26; S_ROT = 27
S_XB = 28; S_WB = 29; S_HB = 30
S_MX = 31; S_MW = 32; S_MH = 33
S_T0 = 34; S_T1 = 35; S_T2 = 36; S_T3 = 37
S_RG = 38; S_HP = 39; S_TAG = 40; S_BR = 41; S_QB = 42; S_CNT = 43
S_M0 = 44; S_M1 = 46; S_M2 = 48
S_G = [50, 51, 52, 53]
S_WOA = 4
S_P_WS = 56; S_P_DBG = 58
S_OUT = 60
S_RB64 = 54; S_CB = 55
S_ROT2 = 64; S_WOB_OFF = 65

def prologue(p):
    p.stamp()
    p(f"""
    s_cmp_ge_u32 s2, 256
    s_cbranch_scc1 L_END
    s_load_dwordx2 s[4:5], s[0:1], 0
    s_load_dwordx2 s[6:7], s[0:1], 8
    s_load_dwordx2 s[54:55], s[0:1], 32
    s_load_dwordx2 s[20:21], s[0:1], 48
    s_load_dwordx4 s[60:63], s[0:1], 56
    s_load_dwordx2 s[{S_P_WS}:{S_P_WS+1}], s[0:1], 72
    v_lshrrev_b32 v{V_T}, 6, v0
    v_and_b32 v{V_LANE}, 63, v0
    v_readfirstlane_b32 s{S_WAVE}, v{V_T}
    s_and_b32 s{S_T0}, s2, 7
    s_lshr_b32 s{S_T1}, s2, 3
    s_and_b32 s{S_RB}, s{S_T0}, 1
    s_lshl_b32 s{S_RB}, s{S_RB}, 3
    s_and_b32 s{S_T2}, s{S_T1}, 7
    s_add_u32 s{S_RB}, s{S_RB}, s{S_T2}
    s_lshr_b32 s{S_T3}, s{S_T1}, 3
    s_lshl_b32 s{S_ROT}, s{S_T3}, 1
    s_add_u32 s{S_ROT}, s{S_ROT}, s{S_T2}
    s_and_b32 s{S_ROT}, s{S_ROT}, 7
    s_lshr_b32 s{S_T0}, s{S_T0}, 1
    s_lshl_b32 s{S_T0}, s{S_T0}, 2
    s_add_u32 s{S_T0}, s{S_T0}, s{S_T3}
    s_lshr_b32 s{S_BR}, s{S_T0}, 3
    s_and_b32 s{S_HG}, s{S_T0}, 7
    s_and_b32 s{S_RG}, s{S_WAVE}, 3
    s_lshr_b32 s{S_HP}, s{S_WAVE}, 2
    """)
    L, T = V_LANE, V_T
    p(f"""
    v_lshrrev_b32 v{T}, 3, v{L}
    v_lshrrev_b32 v{T+1}, 4, v{L}
    v_and_b32 v{T+2}, 7, v{L}
    v_xor_b32 v{T+3}, v{T+2}, v{T+1}
    v_lshlrev_b32 v{T+3}, 4, v{T+3}
    v_lshl_add_u32 v{V_X0}, v{T}, 10, v{T+3}
    v_xor_b32 v{V_X1}, 64, v{V_X0}
    v_add_u32 v{V_X1}, {8192-1024}, v{V_X1}
    s_and_b32 s{S_T0}, s{S_WAVE}, 1
    s_lshl_b32 s{S_T0}, s{S_T0}, 2
    v_and_b32 v{T+1}, 1, v{T+1}
    v_lshlrev_b32 v{T+1}, 1, v{T+1}
    v_or_b32 v{T+1}, s{S_T0}, v{T+1}
    v_xor_b32 v{T+3}, v{T+2}, v{T+1}
    v_lshlrev_b32 v{T+3}, 4, v{T+3}
    v_mul_u32_u24 v{V_W}, 3072, v{T}
    v_add_u32 v{V_W}, v{V_W}, v{T+3}
    v_xor_b32 v{T+3}, s{S_WAVE}, v{T+2}
    v_lshlrev_b32 v{T+3}, 4, v{T+3}
    v_lshl_add_u32 v{V_H}, v{T}, 10, v{T+3}
    s_lshl_b32 s{S_XB}, s{S_RB}, 17
    s_lshl_b32 s{S_T0}, s{S_WAVE}, 14
    s_add_u32 s{S_XB}, s{S_XB}, s{S_T0}
    s_mul_i32 s{S_QB}, s{S_WAVE}, {8*3072}
    s_lshl_b32 s{S_T0}, s{S_HG}, 7
    s_add_u32 s{S_QB}, s{S_QB}, s{S_T0}
    s_add_u32 s{S_WB}, s{S_QB}, 1024
    s_lshl_b32 s{S_HB}, s{S_RB}, 7
    s_sub_u32 s{S_HB}, s{S_HB}, 16
    s_max_i32 s{S_HB}, s{S_HB}, 0
    s_lshl_b32 s{S_T0}, s{S_WAVE}, 1
    s_add_u32 s{S_HB}, s{S_HB}, s{S_T0}
    s_lshl_b32 s{S_HB}, s{S_HB}, 10
    s_lshl_b32 s{S_MX}, s{S_WAVE}, 11
    s_add_u32 s{S_MW}, s{S_MX}, {W_OFF}
    s_lshl_b32 s{S_MH}, s{S_WAVE}, 8
    s_add_u32 s{S_MH}, s{S_MH}, {XH_OFF}
    s_cmp_eq_u32 s{S_BR}, 0
    s_waitcnt lgkmcnt(0)
    s_cselect_b32 s{S_W}, s6, s54
    s_cselect_b32 s{S_W+1}, s7, s55
    s_mov_b32 s{S_W+2}, {512*3072}
    s_mov_b32 s{S_W+3}, 0x20000
    s_mov_b32 s{S_X}, s4
    s_mov_b32 s{S_X+1}, s5
    s_mov_b32 s{S_X+2}, {2048*1024}
    s_mov_b32 s{S_X+3}, 0x20000
    """)

def prologue2(p):
    p(f"""
    s_mov_b32 s{S_P_DBG}, s62
    s_mov_b32 s{S_P_DBG+1}, s63
    s_mov_b32 s{S_OUT+2}, {2048*1024}
    s_mov_b32 s{S_OUT+3}, 0x20000
    s_mov_b32 s{S_WS}, s{S_P_WS}
    s_mov_b32 s{S_WS+1}, s{S_P_WS+1}
    s_mov_b32 s{S_WS+2}, {WS_BYTES}
    s_mov_b32 s{S_WS+3}, 0x20000
    s_load_dwordx2 s[4:5], s[0:1], 16
    s_load_dwordx2 s[6:7], s[0:1], 40
    """)
    lab = p.newlabel("NONCE")
    p(f"""
    s_or_b32 s{S_T0}, s2, s{S_WAVE}
    s_cmp_lg_u32 s{S_T0}, 0
    s_cbranch_scc1 {lab}
    s_memrealtime s[{S_M0}:{S_M0+1}]
    s_waitcnt lgkmcnt(0)
    s_mul_i32 s{S_M0}, s{S_M0}, 0x9E3779B1
    s_or_b32 s{S_M0}, s{S_M0}, 1
    v_mov_b32 v{V_T}, s{S_M0}
    v_mov_b32 v{V_T+1}, 0
    s_mov_b64 exec, 1
    """)
    p.lines.append(f"global_store_dword v{V_T+1}, v{V_T}, s[{S_P_DBG}:{S_P_DBG+1}] sc1")
    p("s_mov_b64 exec, -1")
    p.label(lab)
    p(f"v_mov_b32 v22, 0")
    p(f"""
    s_and_b32 s{S_T0}, s2, 7
    s_lshr_b32 s{S_T1}, s2, 3
    s_lshr_b32 s{S_RB64}, s{S_T0}, 1
    s_lshl_b32 s{S_RB64}, s{S_RB64}, 3
    s_and_b32 s{S_T2}, s{S_T1}, 7
    s_add_u32 s{S_RB64}, s{S_RB64}, s{S_T2}
    s_lshr_b32 s{S_T3}, s{S_T1}, 3
    s_and_b32 s{S_CB}, s{S_T0}, 1
    s_lshl_b32 s{S_CB}, s{S_CB}, 2
    s_add_u32 s{S_CB}, s{S_CB}, s{S_T3}
    s_mov_b32 s{S_ROT2}, s{S_ROT}
    s_lshl_b32 s{S_WOB_OFF}, s{S_WAVE}, 13
    s_lshl_b32 s{S_T0}, s{S_CB}, 7
    s_add_u32 s{S_WOB_OFF}, s{S_WOB_OFF}, s{S_T0}
    """)

def gate_dma(p):
    L = V_LANE
    p(f"""
    s_mov_b32 s{S_GATE+2}, 1024
    s_mov_b32 s{S_GATE+3}, 0x20000
    s_lshl_b32 s{S_T0}, s{S_ROT}, 3
    v_add_u32 v{V_C3}, s{S_T0}, v{L}
    v_and_b32 v{V_C3}, 63, v{V_C3}
    v_lshlrev_b32 v{V_C3}, 4, v{V_C3}
    s_mov_b32 m0, {GATE_L}
    s_nop 0
    """)
    p(f"buffer_load_dwordx4 v{V_C3}, s[{S_GATE}:{S_GATE+3}], 0 offen lds", tag="gate")

def wo_srds(p):
    p(f"""
    s_waitcnt lgkmcnt(0)
    s_mov_b32 s{S_GATE}, s6
    s_mov_b32 s{S_GATE+1}, s7
    s_mov_b32 s{S_GATE+2}, {512*1024}
    s_mov_b32 s{S_GATE+3}, 0x20000
    s_mov_b32 s6, {512*1024}
    s_mov_b32 s7, 0x20000
    """)

def dma_slice(p, q, isB):
    so = (q % 4) * SLOT
    p(f"""
    s_add_u32 s{S_T0}, s{S_ROT}, {q}
    s_and_b32 s{S_T0}, s{S_T0}, 7
    s_lshl_b32 s{S_T1}, s{S_T0}, 7
    s_mul_i32 s{S_T2}, s{S_T0}, {64*3072}
    s_add_u32 s{S_T3}, s{S_T1}, s{S_XB}
    s_add_u32 m0, s{S_MX}, {so}
    s_add_u32 s{S_T2}, s{S_T2}, s{S_WB}
    buffer_load_dwordx4 v{V_X0}, s[{S_X}:{S_X+3}], s{S_T3} offen lds
    buffer_load_dwordx4 v{V_X1}, s[{S_X}:{S_X+3}], s{S_T3} offen offset:1024 lds
    s_add_u32 m0, s{S_MW}, {so}
    s_nop 0
    buffer_load_dwordx4 v{V_W}, s[{S_W}:{S_W+3}], s{S_T2} offen lds
    buffer_load_dwordx4 v{V_W}, s[{S_W}:{S_W+3}], s{S_T2} offen offset:1024 lds
    """)
    if isB:
        p(f"""
        s_add_u32 s{S_T1}, s{S_T1}, s{S_HB}
        s_add_u32 m0, s{S_MH}, {so}
        s_mov_b64 exec, 0xffff
        buffer_load_dwordx4 v{V_H}, s[{S_X}:{S_X+3}], s{S_T1} offen lds
        s_mov_b64 exec, -1
        """)

def dma_wq(p, half):
    for pp in range(4 * half, 4 * half + 4):
        ldso = half * SLOT + ((pp >> 1) & 1) * 16384 + (pp & 1) * 1024
        p(f"""
        s_add_u32 s{S_T0}, s{S_ROT}, {pp}
        s_and_b32 s{S_T0}, s{S_T0}, 7
        s_mul_i32 s{S_T2}, s{S_T0}, {64*3072}
        s_add_u32 m0, s{S_MX}, {ldso}
        s_add_u32 s{S_T2}, s{S_T2}, s{S_QB}
        buffer_load_dwordx4 v{V_W}, s[{S_W}:{S_W+3}], s{S_T2} offen lds
        """)

V_WO = 5
def wo_voff(p):
    L, T = V_LANE, V_T
    p(f"""
    v_lshrrev_b32 v{T}, 3, v{L}
    v_lshrrev_b32 v{T+1}, 4, v{L}
    v_lshlrev_b32 v{T+1}, 1, v{T+1}
    v_and_b32 v{T+2}, 7, v{L}
    v_xor_b32 v{T+1}, v{T+1}, v{T+2}
    v_lshlrev_b32 v{T+1}, 4, v{T+1}
    v_lshl_add_u32 v{V_WO}, v{T}, 10, v{T+1}
    """)

def dma_wo(p, br):
    srd = S_GATE if br else S_WOA
    base = WOB_L if br else WOA_L
    for pos in range(8):
        p(f"""
        s_add_u32 s{S_T0}, s{S_ROT2}, {pos}
        s_and_b32 s{S_T0}, s{S_T0}, 7
        s_lshl_b32 s{S_T0}, s{S_T0}, 16
        s_lshl_b32 s{S_T1}, s{S_WAVE}, 10
        s_add_u32 m0, s{S_T1}, {base + pos * 8192}
        s_add_u32 s{S_T0}, s{S_T0}, s{S_WOB_OFF}
        buffer_load_dwordx4 v{V_WO}, s[{srd}:{srd+3}], s{S_T0} offen lds
        """)

def read_addr_setup(p, isB):
    L, T = V_LANE, V_T
    p(f"""
    v_and_b32 v{T}, 15, v{L}
    v_lshrrev_b32 v{T+1}, 4, v{L}
    v_lshrrev_b32 v{T+2}, 1, v{T}
    v_xor_b32 v{T+2}, v{T+2}, v{T+1}
    v_lshlrev_b32 v{T+2}, 4, v{T+2}
    v_lshl_add_u32 v{T+2}, v{T}, 7, v{T+2}
    s_lshl_b32 s{S_T0}, s{S_RG}, 12
    v_add_u32 v{V_XR[0][0]}, s{S_T0}, v{T+2}
    v_xor_b32 v{V_XR[0][1]}, 64, v{V_XR[0][0]}
    v_add_u32 v{V_XR[1][0]}, {2*SLOT}, v{V_XR[0][0]}
    v_add_u32 v{V_XR[1][1]}, {2*SLOT}, v{V_XR[0][1]}
    """)
    if isB:
        p(f"""
        v_add_u32 v{V_XH[0][0]}, {XH_OFF}, v{T+2}
        v_xor_b32 v{V_XH[0][1]}, 64, v{V_XH[0][0]}
        v_add_u32 v{V_XH[1][0]}, {2*SLOT}, v{V_XH[0][0]}
        v_add_u32 v{V_XH[1][1]}, {2*SLOT}, v{V_XH[0][1]}
        """)
    p(f"""
    v_lshrrev_b32 v{T+2}, 2, v{T}
    v_lshrrev_b32 v{T+3}, 1, v{T+2}
    v_and_b32 v{V_C0}, 1, v{T+1}
    v_lshl_or_b32 v{T+3}, v{V_C0}, 1, v{T+3}
    s_lshl_b32 s{S_T0}, s{S_HP}, 1
    v_xor_b32 v{T+3}, s{S_T0}, v{T+3}
    v_lshlrev_b32 v{T+3}, 5, v{T+3}
    v_lshl_add_u32 v{T+3}, v{T+2}, 7, v{T+3}
    v_lshl_add_u32 v{T+3}, v{T+1}, 11, v{T+3}
    v_and_b32 v{V_C0}, 3, v{L}
    v_lshl_add_u32 v{V_WR[0][0]}, v{V_C0}, 3, v{T+3}
    v_xor_b32 v{V_WR[0][1]}, 32, v{V_WR[0][0]}
    v_add_u32 v{V_WR[1][0]}, {2*SLOT}, v{V_WR[0][0]}
    v_add_u32 v{V_WR[1][1]}, {2*SLOT}, v{V_WR[0][1]}
    """)
    if isB:
        p(f"""
        s_and_b32 s{S_T0}, s{S_RG}, 1
        s_lshl_b32 s{S_T0}, s{S_T0}, 5
        s_lshr_b32 s{S_T1}, s{S_RG}, 1
        s_lshl_b32 s{S_T1}, s{S_T1}, 10
        v_xor_b32 v{V_WH[0]}, s{S_T0}, v{V_WR[0][0]}
        v_add_u32 v{V_WH[0]}, s{S_T1}, v{V_WH[0]}
        v_add_u32 v{V_WH[1]}, {2*SLOT}, v{V_WH[0]}
        """)

def s1_reads(t, isB):
    pos, ks = t >> 1, t & 1
    st = t & 1
    slot = pos % 4; hi = slot >> 1; so = (slot & 1) * SLOT
    r = []
    def wf(m, j):
        f = V_WF[st] + (m * 2 + j) * 4
        o = so + W_OFF + ks * 8192 + m * 1024
        return [f"ds_read_b64_tr_b16 {vr(f, 2)}, v{V_WR[hi][j]} offset:{o}",
                f"ds_read_b64_tr_b16 {vr(f+2, 2)}, v{V_WR[hi][j]} offset:{o + 512}"]
    def xf(b): return [f"ds_read_b128 {ar(xfr(t, b), 4)}, v{V_XR[hi][ks]} offset:{so + b * 2048}"]
    if "nox" in EXP: xf = lambda b: []
    if "now" in EXP: wf = lambda m, j: []
    r += xf(0) + wf(0, 0) + xf(1) + wf(0, 1) + wf(1, 0) + wf(1, 1)
    if isB:
        r.append(f"ds_read_b128 {vr(V_XHF[st], 4)}, v{V_XH[hi][ks]} offset:{so}")
        o = so + W_OFF + ks * 8192
        r.append(f"ds_read_b64_tr_b16 {vr(V_WHF[st], 2)}, v{V_WH[hi]} offset:{o}")
        r.append(f"ds_read_b64_tr_b16 {vr(V_WHF[st]+2, 2)}, v{V_WH[hi]} offset:{o + 512}")
    return r

def s1_mfmas(t, isB):
    st = t & 1
    first = (t == 0)
    r = []
    for m in range(2):
        for j in range(2):
            for b in range(2):
                d = acc(V_AK if m == 0 else V_AV, b, j)
                w = vr(V_WF[st] + (m * 2 + j) * 4, 4)
                x = ar(xfr(t, b), 4)
                c = "0" if first else vr(d, 4)
                r.append(mfma32(vr(d, 4), w, x, c) if (isB and m == 0) else mfma32(vr(d, 4), x, w, c))
    if isB:
        c = "0" if first else vr(V_AH, 4)
        r.append(mfma32(vr(V_AH, 4), vr(V_XHF[st], 4), vr(V_WHF[st], 4), c))
    return r

V_NONCE = 22
def nonce_load(p):
    p(f"v_mov_b32 v{V_T+3}, 0")
    p(f"global_load_dword v{V_NONCE}, v{V_T+3}, s[{S_P_DBG}:{S_P_DBG+1}] sc1")

def stage1(p, isB, early):
    p.curtag = "s0"; dma_slice(p, 0, isB)
    early(p)
    p.curtag = "s1"; dma_slice(p, 1, isB)
    p.curtag = "s2"; dma_slice(p, 2, isB)
    p.curtag = "?"
    p.vmwait("s0")
    p("s_barrier")
    if FINE: p.stamp()
    for l in s1_reads(0, isB): p(l)
    pend = []
    for t in range(16):
        pos = t >> 1
        if t & 1:
            npos = pos + 1
            if npos < 8:
                p.vmwait(f"s{npos}", "lgkmcnt(0)")
                p("s_barrier")
                if FINE: p.stamp()
            else:
                p("s_waitcnt lgkmcnt(0)")
                p("s_barrier")
            q = pos + 4 - 0
            q = pos + 3 + 1
        reads = s1_reads(t + 1, isB) if t + 1 < 16 else []
        rper = 2
        chunks = []
        if t & 1:
            q = pos + 4
            if q < 8:
                pend = [(f"s{q}", c) for c in split_vm(capture(dma_slice, q, isB))]
            elif q == 8:
                pend = [("wq0", c) for c in split_vm(capture(dma_wq, 0))]
            elif q == 9:
                pend = [("wq1", c) for c in split_vm(capture(dma_wq, 1))]
            else:
                pend = []
            h = (len(pend) + 1) // 2
            chunks, pend = pend[:h], pend[h:]
        else:
            if t == 0:
                chunks = [("s3", c) for c in split_vm(capture(dma_slice, 3, isB))]
            else:
                chunks, pend = pend, []
            if t == 6:
                chunks = chunks + [("nonce", capture(nonce_load))]
            p("s_waitcnt lgkmcnt(0)")
        if "nodma" in EXP and t > 0:
            chunks = [(tg, [l for l in c if not l.startswith("buffer_load")] + ["buffer_load_dword v24, v1, s[8:11], 0 offen"]) for tg, c in chunks[:0]]
            for q in range(4, 8):
                if f"s{q}" not in p.vm: p.vm.append(f"s{q}")
            for q in ("wq0", "wq1", "nonce"):
                if q not in p.vm: p.vm.append(q)
        block(p, s1_mfmas(t, isB), reads, chunks, rper)

def s2_reads(t):
    pos, ks = t >> 1, t & 1
    st = t & 1
    half = pos >> 2
    o = half * SLOT + ((pos >> 1) & 1) * 16384 + (pos & 1) * 1024 + ks * 8192
    r = []
    for j in range(2):
        f = V_WF[0] + st * 8 + j * 4
        r.append(f"ds_read_b64_tr_b16 {vr(f, 2)}, v{V_WR[0][j]} offset:{o}")
        r.append(f"ds_read_b64_tr_b16 {vr(f+2, 2)}, v{V_WR[0][j]} offset:{o + 512}")
    return r
def s2_mfmas(t):
    st = t & 1
    r = []
    for j in range(2):
        for b in range(2):
            d = acc(V_AQ, b, j)
            w = vr(V_WF[0] + st * 8 + j * 4, 4)
            r.append(mfma32(vr(d, 4), w, ar(xfr(t, b), 4), "0" if t == 0 else vr(d, 4)))
    return r

def stage2(p, extra):
    p.vmwait("wq0", "lgkmcnt(0)")
    p("s_barrier")
    for l in s2_reads(0): p(l)
    for t in range(16):
        if t == 7:
            p.vmwait("wq1", "lgkmcnt(0)")
            p("s_barrier")
        else:
            p("s_waitcnt lgkmcnt(0)")
        block(p, s2_mfmas(t), s2_reads(t + 1) if t < 15 else [], extra.get(t, []), 2)

def phi_batch(p, regs, tmp):
    n = len(regs)
    for i, r in enumerate(regs): p(f"v_mul_f32 v{tmp+i}, v{r}, v{V_C0}")
    for i, r in enumerate(regs): p(f"v_exp_f32_e64 v{tmp+i}, v{tmp+i} clamp")
    for i, r in enumerate(regs): p(f"v_add_f32_e64 v{r}, v{r}, abs(v{r})")
    for i, r in enumerate(regs): p(f"v_add_f32 v{tmp+i}, v{tmp+i}, v{V_C1}")
    for i, r in enumerate(regs): p(f"v_fma_f32 v{r}, v{r}, 0.5, v{tmp+i}")

def get_tag(p):
    lab = p.newlabel("NW"); ok = p.newlabel("NOK")
    p.vmwait("nonce")
    p(f"s_mov_b32 s{S_CNT}, 0")
    p.label(lab)
    p(f"v_readfirstlane_b32 s{S_TAG}, v{V_NONCE}")
    p(f"s_cmp_lg_u32 s{S_TAG}, 0")
    p(f"s_cbranch_scc1 {ok}")
    p(f"s_add_u32 s{S_CNT}, s{S_CNT}, 1")
    p(f"s_cmp_ge_u32 s{S_CNT}, {SPIN_LIMIT}")
    p(f"s_cbranch_scc1 {ok}")
    p(f"v_mov_b32 v{V_T+3}, 0")
    p.lines.append(f"global_load_dword v{V_NONCE}, v{V_T+3}, s[{S_P_DBG}:{S_P_DBG+1}] sc1")
    p("s_waitcnt vmcnt(0)")
    p(f"s_branch {lab}")
    p.label(ok)

def gather_loads(p, GB):
    for i in range(4):
        for j in range(2):
            r = GB + (i * 2 + j) * 4
            p(f"buffer_load_dwordx4 {vr(r, 4)}, v{V_C2}, s[{S_WS}:{S_WS+3}], s{S_G[i]} offen offset:{j*1024} sc1")

def path_A(p):
    L = V_LANE
    def early(p):
        p.curtag = "gate"; gate_dma(p); p.curtag = "?"
        prologue2(p)
        read_addr_setup(p, False)
        wo_srds(p)
    stage1(p, False, early)
    p.stamp()
    T = V_WF[0]
    p(f"v_mov_b32 v{V_C0}, 0x3fb8aa3b")
    p(f"v_mov_b32 v{V_C1}, 0x358637bd")
    get_tag(p)
    PK = 44; VV = 52; ONES = 60
    for j in range(2):
        for b in range(2):
            v0 = acc(V_AV, b, j)
            p(f"v_cvt_pk_bf16_f32 v{VV + j*4 + b*2}, v{v0}, v{v0+1}")
            p(f"v_cvt_pk_bf16_f32 v{VV + j*4 + b*2 + 1}, v{v0+2}, v{v0+3}")
    phi_batch(p, [V_AK + i for i in range(8)], T)
    phi_batch(p, [V_AK + 8 + i for i in range(8)], T + 8)
    for i in range(4): p(f"v_mov_b32 v{ONES+i}, 0x3f803f80")
    for j in range(2):
        for b in range(2):
            a0 = acc(V_AK, b, j)
            p(f"v_cvt_pk_bf16_f32 v{PK + j*4 + b*2}, v{a0}, v{a0+1}")
            p(f"v_cvt_pk_bf16_f32 v{PK + j*4 + b*2 + 1}, v{a0+2}, v{a0+3}")
    KVD = V_AK
    for j in range(2):
        p(mfma32(vr(KVD + j*4, 4), vr(PK + j*4, 4), vr(VV + j*4, 4), "0"))
        p(mfma32(vr(KVD + 8 + j*4, 4), vr(ONES, 4), vr(PK + j*4, 4), "0"))
    A0 = 64; A1 = 65
    p(f"""
    s_lshl_b32 s{S_T0}, s{S_HP}, 3
    s_add_u32 s{S_T0}, s{S_T0}, s{S_RG}
    s_lshl_b32 s{S_T1}, s{S_T0}, 10
    s_add_u32 s{S_T1}, s{S_T1}, {RED}
    v_lshl_add_u32 v{A0}, v{L}, 4, s{S_T1}
    s_lshl_b32 s{S_T1}, s{S_T0}, 6
    s_add_u32 s{S_T1}, s{S_T1}, {RED + 16384}
    v_and_b32 v{A1}, 15, v{L}
    v_lshl_add_u32 v{A1}, v{A1}, 2, s{S_T1}
    """)
    B0 = 66; B1 = 67
    p(f"""
    s_and_b32 s{S_T2}, s{S_RG}, 1
    s_lshl_b32 s{S_T3}, s{S_HP}, 1
    s_add_u32 s{S_T2}, s{S_T2}, s{S_T3}
    s_lshl_b32 s{S_T1}, s{S_T2}, 12
    s_add_u32 s{S_T1}, s{S_T1}, {RED}
    v_lshl_add_u32 v{B0}, v{L}, 4, s{S_T1}
    s_lshl_b32 s{S_T1}, s{S_T2}, 8
    s_add_u32 s{S_T1}, s{S_T1}, {RED + 16384}
    v_and_b32 v{B1}, 15, v{L}
    v_lshl_add_u32 v{B1}, v{B1}, 2, s{S_T1}
    s_lshl_b32 s{S_T0}, s{S_HG}, 4
    s_add_u32 s{S_T0}, s{S_T0}, s{S_RB}
    s_lshl_b32 s{S_T0}, s{S_T0}, 2
    s_add_u32 s{S_T0}, s{S_T0}, s{S_T2}
    s_lshl_b32 s{S_T0}, s{S_T0}, 10
    s_add_u32 s{S_G[0]}, s{S_T0}, {OFF_KV}
    v_lshlrev_b32 v{V_C2}, 4, v{L}
    """)
    for j in range(2):
        p(f"ds_write_b128 v{A0}, {vr(KVD + j*4, 4)} offset:{j * 4096}")
        p(f"ds_write_b32 v{A1}, v{KVD + 8 + j*4} offset:{j * 256}")
    p("s_waitcnt lgkmcnt(0)")
    p("s_barrier")
    R = 28
    for i in range(4):
        p(f"ds_read_b128 {vr(R + i*4, 4)}, v{B0} offset:{i * 1024}")
        p(f"ds_read_b32 v{R + 16 + i}, v{B1} offset:{i * 64}")
    p("s_waitcnt lgkmcnt(0)")
    for r in range(4):
        p(f"v_add_f32 v{R + r}, v{R + r}, v{R + 4 + r}")
        p(f"v_add_f32 v{R + 8 + r}, v{R + 8 + r}, v{R + 12 + r}")
    p(f"v_add_f32 v{R+16}, v{R+16}, v{R+17}")
    p(f"v_add_f32 v{R+18}, v{R+18}, v{R+19}")
    for r in range(4):
        p(f"v_add_f32 v{R + r}, v{R + r}, v{R + 8 + r}")
    G = 48
    p(f"""
    v_add_f32 v{G+2}, v{R+16}, v{R+18}
    v_mov_b32 v{G+3}, s{S_TAG}
    v_cvt_pk_bf16_f32 v{G}, v{R}, v{R+1}
    v_cvt_pk_bf16_f32 v{G+1}, v{R+2}, v{R+3}
    """)
    p(f"buffer_store_dwordx4 {vr(G, 4)}, v{V_C2}, s[{S_WS}:{S_WS+3}], s{S_G[0]} offen sc1", tag="pub")
    p.stamp()
    p(f"""
    s_lshl_b32 s{S_T0}, s{S_HG}, 4
    s_lshl_b32 s{S_T1}, s{S_RG}, 2
    s_add_u32 s{S_T0}, s{S_T0}, s{S_T1}
    s_lshl_b32 s{S_T0}, s{S_T0}, 2
    s_lshl_b32 s{S_T1}, s{S_HP}, 1
    s_add_u32 s{S_T0}, s{S_T0}, s{S_T1}
    s_lshl_b32 s{S_T0}, s{S_T0}, 10
    s_add_u32 s{S_G[0]}, s{S_T0}, {OFF_KV}
    s_add_u32 s{S_G[1]}, s{S_G[0]}, 4096
    s_add_u32 s{S_G[2]}, s{S_G[0]}, 8192
    s_add_u32 s{S_G[3]}, s{S_G[0]}, 12288
    """)
    wo_voff(p)
    GB = 76
    ex = {}
    wob = [("wob", c) for c in split_vm(capture(dma_wo, 1))]
    for i, c in enumerate(wob): ex.setdefault(1 + i, []).append(c)
    gl = [("gath", c) for c in split_vm(capture(gather_loads, GB))]
    for i, c in enumerate(gl): ex.setdefault(12 + i // 2, []).append(c)
    stage2(p, ex)
    p.stamp()
    p("s_barrier")
    woa = [("woa", c) for c in split_vm(capture(dma_wo, 0))]
    c = Cap()
    phi_batch(c, [V_AQ + i for i in range(8)], 28)
    phi_batch(c, [V_AQ + 8 + i for i in range(8)], 36)
    PQ = 44
    for b in range(2):
        for j in range(2):
            a0 = acc(V_AQ, b, j)
            c(f"v_cvt_pk_bf16_f32 v{PQ + (b*2+j)*2}, v{a0}, v{a0+1}")
            c(f"v_cvt_pk_bf16_f32 v{PQ + (b*2+j)*2 + 1}, v{a0+2}, v{a0+3}")
    block(p, c.lines, [], woa, 0)
    labg = p.newlabel("A_NOGATE")
    p(f"""
    s_lshr_b32 s{S_T0}, s{S_HG}, 1
    s_and_b32 s{S_T1}, s{S_HG}, 1
    s_lshl_b32 s{S_T1}, s{S_T1}, 2
    s_add_u32 s{S_T0}, s{S_T0}, s{S_T1}
    s_cmp_lg_u32 s{S_T0}, s{S_WAVE}
    s_cbranch_scc1 {labg}
    """)
    GW = 28; GA = 108
    p(f"""
    v_lshrrev_b32 v{V_T+2}, 4, v{L}
    v_lshlrev_b32 v{V_T+2}, 4, v{V_T+2}
    v_add_u32 v{V_T+2}, {GATE_L}, v{V_T+2}
    """)
    labb1 = p.newlabel("A_GB1"); labge = p.newlabel("A_GEND")
    p(f"s_cmp_eq_u32 s{S_HP}, 1")
    p(f"s_cbranch_scc1 {labb1}")
    for b in range(2):
        if b == 1: p.label(labb1)
        for tq in range(4):
            for u in range(4):
                p(f"ds_read_b128 {vr(GW + u*4, 4)}, v{V_T+2} offset:{(tq*4+u) * 64}")
            p("s_waitcnt lgkmcnt(0)")
            for u in range(4):
                t = tq * 4 + u
                p(mfma32(vr(GA, 4), vr(GW + u*4, 4), ar(xfr(t, b), 4), "0" if t == 0 else vr(GA, 4)))
        if b == 0: p(f"s_branch {labge}")
    p.label(labge)
    p(f"""
    v_mul_f32 v{GA+1}, v{GA}, v{V_C0}
    v_sub_f32 v{GA+1}, 0, v{GA+1}
    v_exp_f32 v{GA+1}, v{GA+1}
    v_add_f32 v{GA+1}, 1.0, v{GA+1}
    v_rcp_f32 v{GA+1}, v{GA+1}
    s_lshl_b32 s{S_T0}, s{S_RB}, 7
    s_lshl_b32 s{S_T1}, s{S_HG}, 4
    s_add_u32 s{S_T0}, s{S_T0}, s{S_T1}
    s_lshl_b32 s{S_T0}, s{S_T0}, 2
    s_add_u32 s{S_T0}, s{S_T0}, {OFF_G}
    v_lshlrev_b32 v{GA+2}, 2, v{L}
    s_mov_b64 exec, 0xffff
    """)
    p.lines.append(f"buffer_store_dword v{GA+1}, v{GA+2}, s[{S_WS}:{S_WS+3}], s{S_T0} offen sc1")
    p("s_mov_b64 exec, -1")
    p.label(labg)
    labp = p.newlabel("A_POLL"); labok = p.newlabel("A_GOT")
    p.vmwait("gath")
    p(f"s_mov_b32 s{S_CNT}, 0")
    p.label(labp)
    p(f"v_mov_b32 v{V_T+2}, s{S_TAG}")
    for k in range(8):
        p(f"v_xor_b32 v{28+k}, v{GB + k*4 + 3}, v{V_T+2}")
    p(f"v_or3_b32 v28, v28, v29, v30")
    p(f"v_or3_b32 v31, v31, v32, v33")
    p(f"v_or3_b32 v28, v28, v34, v35")
    p(f"v_or_b32 v28, v28, v31")
    p(f"v_cmp_ne_u32 vcc, 0, v28")
    p(f"s_cbranch_vccz {labok}")
    p(f"s_add_u32 s{S_CNT}, s{S_CNT}, 1")
    p(f"s_cmp_ge_u32 s{S_CNT}, {SPIN_LIMIT}")
    p(f"s_cbranch_scc1 {labok}")
    p("s_sleep 1")
    for l in capture(gather_loads, GB): p.lines.append(l)
    p("s_waitcnt vmcnt(0)")
    p(f"s_branch {labp}")
    p.label(labok)
    p.stamp()
    SK = 28
    for j in range(2):
        d = SK + j * 4
        r0 = GB + j * 4
        p(f"v_lshlrev_b32 v{d}, 16, v{r0}")
        p(f"v_and_b32 v{d+1}, 0xffff0000, v{r0}")
        p(f"v_lshlrev_b32 v{d+2}, 16, v{r0+1}")
        p(f"v_and_b32 v{d+3}, 0xffff0000, v{r0+1}")
    for i in range(1, 4):
        for j in range(2):
            r = GB + (i * 2 + j) * 4
            d = SK + j * 4
            t = 52 + j * 4
            p(f"v_lshlrev_b32 v{t}, 16, v{r}")
            p(f"v_and_b32 v{t+1}, 0xffff0000, v{r}")
            p(f"v_lshlrev_b32 v{t+2}, 16, v{r+1}")
            p(f"v_and_b32 v{t+3}, 0xffff0000, v{r+1}")
            for q in range(4): p(f"v_add_f32 v{d+q}, v{d+q}, v{t+q}")
    for j in range(2):
        p(f"v_add_f32 v{36+j}, v{GB + j*4 + 2}, v{GB + (2+j)*4 + 2}")
        p(f"v_add_f32 v{38+j}, v{GB + (4+j)*4 + 2}, v{GB + (6+j)*4 + 2}")
        p(f"v_add_f32 v{36+j}, v{36+j}, v{38+j}")
    for j in range(2):
        p(f"ds_write_b128 v{A0}, {vr(SK + j*4, 4)} offset:{j * 4096}")
        p(f"ds_write_b32 v{A1}, v{36 + j} offset:{j * 256}")
    p(f"""
    s_lshl_b32 s{S_T1}, s{S_HP}, 13
    s_add_u32 s{S_T1}, s{S_T1}, {RED}
    v_lshl_add_u32 v{B0}, v{L}, 4, s{S_T1}
    s_lshl_b32 s{S_T1}, s{S_HP}, 9
    s_add_u32 s{S_T1}, s{S_T1}, {RED + 16384}
    v_lshrrev_b32 v{B1}, 4, v{L}
    v_lshl_add_u32 v{B1}, v{B1}, 4, s{S_T1}
    s_waitcnt lgkmcnt(0)
    s_barrier
    """)
    KB = 76
    for j in range(2):
        for i in range(4):
            p(f"ds_read_b128 {vr(KB + (j*4+i)*4, 4)}, v{B0} offset:{j*4096 + i*1024}")
    ZB = 108
    for i in range(4):
        p(f"ds_read_b128 {vr(ZB + i*4, 4)}, v{B1} offset:{i*64}")
    ZB2 = 28
    for i in range(4):
        p(f"ds_read_b128 {vr(ZB2 + i*4, 4)}, v{B1} offset:{256 + i*64}")
    p("s_waitcnt lgkmcnt(8)")
    KT = 52
    for j in range(2):
        b0 = KB + j * 16
        for q in range(4):
            p(f"v_add_f32 v{b0+q}, v{b0+q}, v{b0+4+q}")
            p(f"v_add_f32 v{b0+8+q}, v{b0+8+q}, v{b0+12+q}")
        for q in range(4): p(f"v_add_f32 v{b0+q}, v{b0+q}, v{b0+8+q}")
        p(f"v_cvt_pk_bf16_f32 v{KT + j*2}, v{b0}, v{b0+1}")
        p(f"v_cvt_pk_bf16_f32 v{KT + j*2 + 1}, v{b0+2}, v{b0+3}")
    p("s_waitcnt lgkmcnt(0)")
    for j, b0 in ((0, ZB), (1, ZB2)):
        for q in range(4):
            p(f"v_add_f32 v{b0+q}, v{b0+q}, v{b0+4+q}")
            p(f"v_add_f32 v{b0+8+q}, v{b0+8+q}, v{b0+12+q}")
        for q in range(4): p(f"v_add_f32 v{b0+q}, v{b0+q}, v{b0+8+q}")
        p(f"v_cvt_pk_bf16_f32 v{KT + 4 + j*2}, v{b0}, v{b0+1}")
        p(f"v_cvt_pk_bf16_f32 v{KT + 4 + j*2 + 1}, v{b0+2}, v{b0+3}")
    NUM = 76; DEN = 92
    for b in range(2):
        for j in range(2):
            pq = vr(PQ + (b*2+j)*2, 2)
            p(mfma16(vr(acc(DEN, b, j), 4), vr(KT + 4 + j*2, 2), pq, "0"))
    for b in range(2):
        for j in range(2):
            pq = vr(PQ + (b*2+j)*2, 2)
            p(mfma16(vr(acc(NUM, b, j), 4), vr(KT + j*2, 2), pq, "0"))
    ofrag_addr(p, 0)
    for u in range(4): p(f"v_add_f32 v{DEN + u*4}, v{DEN + u*4}, v{V_C1}")
    for u in range(4): p(f"v_rcp_f32 v{DEN + u*4}, v{DEN + u*4}")
    OF = 28
    for b in range(2):
        for j in range(2):
            d = acc(DEN, b, j); n = acc(NUM, b, j)
            for q in range(4): p(f"v_mul_f32 v{n+q}, v{n+q}, v{d}")
            p(f"v_cvt_pk_bf16_f32 v{OF + b*4 + j*2}, v{n}, v{n+1}")
            p(f"v_cvt_pk_bf16_f32 v{OF + b*4 + j*2 + 1}, v{n+2}, v{n+3}")
        ofrag_store(p, OF, b)
    p.stamp()

def ofrag_addr(p, branch):
    p(f"""
    s_lshl_b32 s{S_T0}, s{S_RB}, 3
    s_lshl_b32 s{S_T1}, s{S_RG}, 1
    s_add_u32 s{S_T0}, s{S_T0}, s{S_T1}
    s_lshl_b32 s{S_T0}, s{S_T0}, 5
    s_lshl_b32 s{S_T1}, s{S_HG}, 1
    s_add_u32 s{S_T0}, s{S_T0}, s{S_T1}
    s_add_u32 s{S_T0}, s{S_T0}, s{S_HP}
    s_add_u32 s{S_T0}, s{S_T0}, {branch * 16}
    s_lshl_b32 s{S_T0}, s{S_T0}, 10
    s_add_u32 s{S_G[0]}, s{S_T0}, {OFF_O}
    s_add_u32 s{S_G[1]}, s{S_G[0]}, {32 * 1024}
    v_lshlrev_b32 v{V_T}, 4, v{V_LANE}
    """)
def ofrag_store(p, OF, b):
    p(f"buffer_store_dwordx4 {vr(OF + b*4, 4)}, v{V_T}, s[{S_WS}:{S_WS+3}], s{S_G[b]} offen sc1", tag="ost")

def path_B(p):
    L = V_LANE
    def early(p):
        prologue2(p)
        read_addr_setup(p, True)
        wo_srds(p)
    stage1(p, True, early)
    p.stamp()
    KT = 44; VF = 52; KP = 64; HT = 68
    for j in range(2):
        for b in range(2):
            a0 = acc(V_AK, b, j); v0 = acc(V_AV, b, j)
            p(f"v_cvt_pk_bf16_f32 v{KT + (j*2+b)*2}, v{a0}, v{a0+1}")
            p(f"v_cvt_pk_bf16_f32 v{KT + (j*2+b)*2 + 1}, v{a0+2}, v{a0+3}")
            p(f"v_cvt_pk_bf16_f32 v{VF + j*6 + 2 + b*2}, v{v0}, v{v0+1}")
            p(f"v_cvt_pk_bf16_f32 v{VF + j*6 + 2 + b*2 + 1}, v{v0+2}, v{v0+3}")
    p(f"v_cvt_pk_bf16_f32 v{HT}, v{V_AH}, v{V_AH+1}")
    p(f"v_cvt_pk_bf16_f32 v{HT+1}, v{V_AH+2}, v{V_AH+3}")
    A0 = V_C3
    p(f"""
    s_lshl_b32 s{S_T0}, s{S_HP}, 2
    s_add_u32 s{S_T0}, s{S_T0}, s{S_RG}
    s_lshl_b32 s{S_T0}, s{S_T0}, 11
    s_add_u32 s{S_T0}, s{S_T0}, {RED}
    v_lshl_add_u32 v{A0}, v{L}, 3, s{S_T0}
    """)
    lab = p.newlabel("B_NOW")
    p(f"s_cmp_eq_u32 s{S_RG}, 3")
    p(f"s_cbranch_scc1 {lab}")
    for j in range(2):
        p(f"ds_write_b64 v{A0}, {vr(KT + (j*2+1)*2, 2)} offset:{2048 + j*1024}")
        p(f"ds_write_b64 v{A0}, {vr(VF + j*6 + 4, 2)} offset:{2048 + j*1024 + 512}")
    p.label(lab)
    labv = p.newlabel("B_HV"); labd = p.newlabel("B_HD")
    T0, T1, T2, T3 = V_T, V_T + 1, V_T + 2, V_T + 3
    p(f"""
    s_lshl_b32 s{S_T0}, s{S_HP}, 13
    s_and_b32 s{S_T1}, s{S_RG}, 1
    s_lshl_b32 s{S_T1}, s{S_T1}, 10
    s_add_u32 s{S_T0}, s{S_T0}, s{S_T1}
    s_add_u32 s{S_T0}, s{S_T0}, {RED}
    s_cmp_ge_u32 s{S_RG}, 2
    s_cbranch_scc1 {labv}
    v_and_b32 v{T1}, 15, v{L}
    v_lshrrev_b32 v{T2}, 2, v{T1}
    v_lshlrev_b32 v{T2}, 7, v{T2}
    v_lshrrev_b32 v{T3}, 4, v{L}
    v_lshl_add_u32 v{T2}, v{T3}, 5, v{T2}
    v_and_b32 v{T1}, 3, v{T1}
    v_lshl_add_u32 v{T2}, v{T1}, 1, v{T2}
    v_add_u32 v{T2}, s{S_T0}, v{T2}
    ds_write_b16 v{T2}, v{HT} offset:0
    ds_write_b16_d16_hi v{T2}, v{HT} offset:8
    ds_write_b16 v{T2}, v{HT+1} offset:16
    ds_write_b16_d16_hi v{T2}, v{HT+1} offset:24
    s_branch {labd}
    """)
    p.label(labv)
    p(f"""
    v_lshl_add_u32 v{T2}, v{L}, 3, s{S_T0}
    ds_write_b64 v{T2}, {vr(HT, 2)} offset:512
    """)
    p.label(labd)
    get_tag_late = True
    wo_voff(p)
    ex = {}
    wob = [("wob", c) for c in split_vm(capture(dma_wo, 1))]
    for i, c in enumerate(wob): ex.setdefault(1 + i, []).append(c)
    BO = 76; BP = 80; BP0 = 84
    c = Cap()
    c(f"""
    v_and_b32 v{T0}, 15, v{L}
    v_lshrrev_b32 v{T1}, 4, v{L}
    v_lshlrev_b32 v{T1}, 2, v{T1}
    v_sub_u32 v{T0}, v{T0}, v{T1}
    v_mov_b32 v{T3}, 0xcf6e6b28
    s_or_b32 s{S_T0}, s{S_RB}, s{S_RG}
    s_cmp_eq_u32 s{S_T0}, 0
    s_cselect_b64 s[{S_M2}:{S_M2+1}], 0, -1
    """)
    for r in range(4):
        c(f"""
        v_subrev_u32 v{T1}, {r}, v{T0}
        v_and_b32 v{T2}, 1, v{T1}
        v_cmp_eq_u32 s[{S_M0}:{S_M0+1}], 0, v{T2}
        v_cmp_le_i32 s[{S_M1}:{S_M1+1}], 0, v{T1}
        s_and_b64 s[{S_M1}:{S_M1+1}], s[{S_M1}:{S_M1+1}], s[{S_M0}:{S_M0+1}]
        v_cndmask_b32 v{BO+r}, v{T3}, 0, s[{S_M1}:{S_M1+1}]
        v_cmp_ge_i32 s[{S_M1}:{S_M1+1}], -2, v{T1}
        s_and_b64 s[{S_M1}:{S_M1+1}], s[{S_M1}:{S_M1+1}], s[{S_M0}:{S_M0+1}]
        v_cndmask_b32 v{BP+r}, v{T3}, 0, s[{S_M1}:{S_M1+1}]
        s_and_b64 s[{S_M1}:{S_M1+1}], s[{S_M1}:{S_M1+1}], s[{S_M2}:{S_M2+1}]
        v_cndmask_b32 v{BP0+r}, v{T3}, 0, s[{S_M1}:{S_M1+1}]
        """)
    ONES = 88
    c(f"v_mov_b32 v{V_C0}, 0x3eb8aa3b")
    for i in range(4): c(f"v_mov_b32 v{ONES+i}, 0x3f803f80")
    for l in c.lines: p(l)
    stage2(p, ex)
    p.stamp()
    p("s_barrier")
    for j in range(2):
        p(f"ds_read_b64 {vr(KP + j*2, 2)}, v{A0} offset:{j*1024}")
        p(f"ds_read_b64 {vr(VF + j*6, 2)}, v{A0} offset:{j*1024 + 512}")
    QT = 28
    for b in range(2):
        for j in range(2):
            a0 = acc(V_AQ, b, j)
            p(f"v_cvt_pk_bf16_f32 v{QT + (b*2+j)*2}, v{a0}, v{a0+1}")
            p(f"v_cvt_pk_bf16_f32 v{QT + (b*2+j)*2 + 1}, v{a0+2}, v{a0+3}")
    p("s_waitcnt lgkmcnt(0)")
    SP = 92; SO = 108
    for b in range(2):
        for j in range(2):
            u = b * 2 + j
            q = vr(QT + u * 2, 2)
            kprev = vr(KP + j*2, 2) if b == 0 else vr(KT + (j*2+0)*2, 2)
            kown = vr(KT + (j*2+b)*2, 2)
            p(mfma16(vr(SP + u*4, 4), kprev, q, vr(BP0 if b == 0 else BP, 4)))
            p(mfma16(vr(SO + u*4, 4), kown, q, vr(BO, 4)))
    woa = [("woa", c) for c in split_vm(capture(dma_wo, 0))]
    c = Cap()
    MX = 36
    for stp in range(4):
        for u in range(4):
            a = SP + u*4; o = SO + u*4
            if stp == 0: c(f"v_max3_f32 v{MX+u}, v{a}, v{a+1}, v{a+2}")
            if stp == 1: c(f"v_max3_f32 v{MX+u}, v{MX+u}, v{a+3}, v{o}")
            if stp == 2: c(f"v_max3_f32 v{MX+u}, v{MX+u}, v{o+1}, v{o+2}")
            if stp == 3: c(f"v_max_f32 v{MX+u}, v{MX+u}, v{o+3}")
    for sw in ("v_permlane32_swap_b32", "v_permlane16_swap_b32"):
        for u in range(4): c(f"v_mov_b32 v{MX+4+u}, v{MX+u}")
        for u in range(4): c(f"{sw} v{MX+u}, v{MX+4+u}")
        for u in range(4): c(f"v_max_f32 v{MX+u}, v{MX+u}, v{MX+4+u}")
    for u in range(4): c(f"v_mul_f32 v{MX+u}, v{MX+u}, v{V_C0}")
    for u in range(4):
        for base in (SP, SO):
            for r in range(4):
                x = base + u*4 + r
                c(f"v_fma_f32 v{x}, v{x}, v{V_C0}, -v{MX+u}")
    for u in range(4):
        for base in (SP, SO):
            for r in range(4):
                x = base + u*4 + r
                c(f"v_exp_f32 v{x}, v{x}")
    PF = 68
    for u in range(4):
        a = SP + u*4; o = SO + u*4
        c(f"v_cvt_pk_bf16_f32 v{PF + u*4}, v{a}, v{a+1}")
        c(f"v_cvt_pk_bf16_f32 v{PF + u*4 + 1}, v{a+2}, v{a+3}")
        c(f"v_cvt_pk_bf16_f32 v{PF + u*4 + 2}, v{o}, v{o+1}")
        c(f"v_cvt_pk_bf16_f32 v{PF + u*4 + 3}, v{o+2}, v{o+3}")
    block(p, c.lines, [], woa, 0)
    for b in range(2):
        for j in range(2):
            u = b * 2 + j
            p(mfma32(vr(SO + u*4, 4), vr(ONES, 4), vr(PF + u*4, 4), "0"))
    for b in range(2):
        for j in range(2):
            u = b * 2 + j
            p(mfma32(vr(SP + u*4, 4), vr(VF + j*6 + b*2, 4), vr(PF + u*4, 4), "0"))
    ofrag_addr(p, 1)
    for u in range(4): p(f"v_rcp_f32 v{SO + u*4}, v{SO + u*4}")
    OF = 28
    for b in range(2):
        for j in range(2):
            u = b * 2 + j
            n = SP + u*4
            for q in range(4): p(f"v_mul_f32 v{n+q}, v{n+q}, v{SO + u*4}")
            p(f"v_cvt_pk_bf16_f32 v{OF + b*4 + j*2}, v{n}, v{n+1}")
            p(f"v_cvt_pk_bf16_f32 v{OF + b*4 + j*2 + 1}, v{n+2}, v{n+3}")
        ofrag_store(p, OF, b)
    get_tag(p)
    p.stamp()

def phase2(p):
    L = V_LANE; T = V_T
    RBK = S_RG; BR2 = S_HP
    VA = [6, 7, 8, 9]; VO = 10; VG = 11; VFL = 12
    OFR = 76 - 64
    WF = [28, 44]; ACC = 60
    p(f"""
    v_lshrrev_b32 v{T}, 4, v{L}
    v_bfe_u32 v{T+1}, v{L}, 2, 2
    v_lshrrev_b32 v{T+2}, 1, v{T+1}
    v_lshl_add_u32 v{T+2}, v{T}, 1, v{T+2}
    v_and_b32 v{T+2}, 3, v{T+2}
    v_lshlrev_b32 v{T+2}, 5, v{T+2}
    v_lshl_add_u32 v{T+3}, v{T}, 2, v{T+1}
    v_lshl_add_u32 v{T+2}, v{T+3}, 7, v{T+2}
    v_and_b32 v{T+3}, 3, v{L}
    v_lshl_add_u32 v{T+2}, v{T+3}, 3, v{T+2}
    s_mul_i32 s{S_T0}, s{BR2}, {WOB_L}
    v_add_u32 v{VA[0]}, s{S_T0}, v{T+2}
    v_xor_b32 v{VA[1]}, 32, v{VA[0]}
    v_xor_b32 v{VA[2]}, 64, v{VA[0]}
    v_xor_b32 v{VA[3]}, 96, v{VA[0]}
    v_lshlrev_b32 v{VO}, 4, v{L}
    v_and_b32 v{VFL}, 7, v{L}
    v_lshlrev_b32 v{VFL}, 2, v{VFL}
    """)
    p(f"""
    s_lshl_b32 s{S_T0}, s{S_RB}, 7
    s_lshl_b32 s{S_T1}, s{S_BR}, 5
    s_add_u32 s{S_T0}, s{S_T0}, s{S_T1}
    s_lshl_b32 s{S_T1}, s{S_HG}, 2
    s_add_u32 s{S_G[2]}, s{S_T0}, s{S_T1}
    s_lshr_b32 s{S_T0}, s{S_RB64}, 1
    s_lshl_b32 s{S_T0}, s{S_T0}, 7
    s_lshl_b32 s{S_T1}, s{BR2}, 5
    s_add_u32 s{S_G[3]}, s{S_T0}, s{S_T1}
    s_lshl_b32 s{S_G[0]}, s{S_RB64}, 2
    s_add_u32 s{S_G[0]}, s{S_G[0]}, s{RBK}
    s_lshl_b32 s{S_G[1]}, s{S_G[0]}, 6
    s_lshl_b32 s{S_G[0]}, s{S_G[0]}, 5
    s_lshl_b32 s{S_T0}, s{BR2}, 4
    s_add_u32 s{S_G[0]}, s{S_G[0]}, s{S_T0}
    s_lshl_b32 s{S_G[0]}, s{S_G[0]}, 10
    s_add_u32 s{S_G[0]}, s{S_G[0]}, {OFF_O}
    s_waitcnt vmcnt(0)
    s_barrier
    """)
    labf = p.newlabel("NOFLAG")
    p(f"""
    s_cmp_lg_u32 s{S_WAVE}, 0
    s_cbranch_scc1 {labf}
    v_mov_b32 v{T}, s{S_TAG}
    v_mov_b32 v{T+1}, 0
    s_mov_b64 exec, 1
    buffer_store_dword v{T}, v{T+1}, s[{S_WS}:{S_WS+3}], s{S_G[2]} offen offset:{OFF_FL} sc1
    s_mov_b64 exec, -1
    """)
    p.label(labf)
    p.stamp()
    def reads(t):
        pos, ks = t >> 1, t & 1
        st = t & 1
        r = []
        for c4 in range(4):
            f = WF[st] + c4 * 4
            o = pos * 8192 + ks * 4096
            r.append(f"ds_read_b64_tr_b16 {vr(f, 2)}, v{VA[c4]} offset:{o}")
            r.append(f"ds_read_b64_tr_b16 {vr(f+2, 2)}, v{VA[c4]} offset:{o + 2048}")
        return r
    def mf(t):
        st = t & 1
        return [mfma32(vr(ACC + c4*4, 4), vr(WF[st] + c4*4, 4), ar(t*4, 4), "0" if t == 0 else vr(ACC + c4*4, 4)) for c4 in range(4)]
    for l in reads(0): p(l)
    labp = p.newlabel("P2"); labok = p.newlabel("P2OK")
    p(f"s_mov_b32 s{S_CNT}, 0")
    p(f"v_mov_b32 v{T+2}, s{S_TAG}")
    p.label(labp)
    p(f"buffer_load_dword v{T+3}, v{VFL}, s[{S_WS}:{S_WS+3}], s{S_G[3]} offen offset:{OFF_FL} sc1")
    p("s_waitcnt vmcnt(0)")
    p(f"v_cmp_ne_u32 vcc, v{T+3}, v{T+2}")
    p(f"s_cbranch_vccz {labok}")
    p(f"s_add_u32 s{S_CNT}, s{S_CNT}, 1")
    p(f"s_cmp_ge_u32 s{S_CNT}, {SPIN_LIMIT}")
    p(f"s_cbranch_scc1 {labok}")
    p("s_sleep 1")
    p(f"s_branch {labp}")
    p.label(labok)
    p.stamp()
    p.vm = []
    p.curtag = "g"
    p(f"""
    v_and_b32 v{T}, 15, v{L}
    v_lshlrev_b32 v{T}, 2, v{T}
    s_add_u32 s{S_T1}, s{S_G[1]}, {OFF_G}
    buffer_load_dword v{VG}, v{T}, s[{S_WS}:{S_WS+3}], s{S_T1} offen sc1
    """)
    for pos in range(8):
        p.curtag = f"o{pos}"
        p(f"""
        s_add_u32 s{S_T0}, s{S_ROT2}, {pos}
        s_and_b32 s{S_T0}, s{S_T0}, 7
        s_lshl_b32 s{S_T0}, s{S_T0}, 11
        s_add_u32 s{S_T0}, s{S_T0}, s{S_G[0]}
        buffer_load_dwordx4 {ar(2*pos*4, 4)}, v{VO}, s[{S_WS}:{S_WS+3}], s{S_T0} offen sc1
        buffer_load_dwordx4 {ar((2*pos+1)*4, 4)}, v{VO}, s[{S_WS}:{S_WS+3}], s{S_T0} offen offset:1024 sc1
        """)
    for t in range(16):
        if (t & 1) == 0:
            p.vmwait(f"o{t>>1}", "lgkmcnt(0)")
        else:
            p("s_waitcnt lgkmcnt(0)")
        block(p, mf(t), reads(t + 1) if t < 15 else [], [], 2)
    p.stamp()
    lab = p.newlabel("P2_A")
    p(f"""
    s_lshl_b32 s{S_T0}, s{RBK}, 12
    s_add_u32 s{S_T0}, s{S_T0}, {CMB_L}
    v_lshl_add_u32 v{T}, v{L}, 4, s{S_T0}
    s_cmp_eq_u32 s{BR2}, 0
    s_cbranch_scc1 {lab}
    """)
    for c4 in range(4):
        p(f"ds_write_b128 v{T}, {vr(ACC + c4*4, 4)} offset:{c4*1024}")
    p("s_waitcnt lgkmcnt(0)")
    p("s_barrier")
    if DEBUG_STAMPS:
        p("s_branch L_FLUSH")
    else:
        p("s_endpgm")
    p.label(lab)
    p(f"""
    v_and_b32 v{T+1}, 15, v{L}
    v_lshlrev_b32 v{T+1}, 10, v{T+1}
    v_lshrrev_b32 v{T+2}, 4, v{L}
    v_lshl_add_u32 v{T+1}, v{T+2}, 3, v{T+1}
    s_lshl_b32 s{S_T0}, s{S_CB}, 7
    s_lshl_b32 s{S_T1}, s{S_G[1]}, 8
    s_add_u32 s{S_T0}, s{S_T0}, s{S_T1}
    v_sub_f32 v{T+3}, 1.0, v{VG}
    s_barrier
    """)
    for c4 in range(4):
        p(f"ds_read_b128 {vr(WF[0] + c4*4, 4)}, v{T} offset:{c4*1024}")
    for i in range(16): p(f"v_mul_f32 v{ACC+i}, v{ACC+i}, v{VG}")
    p("s_waitcnt lgkmcnt(0)")
    for c4 in range(4):
        for q in range(4):
            p(f"v_fma_f32 v{ACC + c4*4 + q}, v{WF[0] + c4*4 + q}, v{T+3}, v{ACC + c4*4 + q}")
        p(f"v_cvt_pk_bf16_f32 v{44 + c4*2}, v{ACC + c4*4}, v{ACC + c4*4 + 1}")
        p(f"v_cvt_pk_bf16_f32 v{44 + c4*2 + 1}, v{ACC + c4*4 + 2}, v{ACC + c4*4 + 3}")
        p(f"buffer_store_dwordx2 {vr(44 + c4*2, 2)}, v{T+1}, s[{S_OUT}:{S_OUT+3}], s{S_T0} offen offset:{c4*32}")
    p("s_waitcnt vmcnt(0)")

def stamp_flush(p, n):
    if not DEBUG_STAMPS: return
    lab = p.newlabel("ST")
    p.label("L_FLUSH")
    p(f"{'s_memtime' if CYC else 's_memrealtime'} s[98:99]")
    p("s_waitcnt lgkmcnt(0)")
    p("v_cmp_eq_u32 vcc, 0, v0")
    p("s_and_saveexec_b64 s[96:97], vcc")
    p(f"s_cbranch_execz {lab}")
    if DBGOUT:
        lab2 = p.newlabel("STD")
        p(f"s_cmp_eq_u32 s2, 0")
        p(f"s_cbranch_scc1 {lab2}")
        p(f"s_cmp_lg_u32 s2, 255")
        p(f"s_cbranch_scc1 {lab}")
        p("v_mov_b32 v2, 0")
        p(f"v_mov_b32 v5, s{STAMP_BASE}")
        p(f"global_store_dword v2, v5, s[{S_P_DBG}:{S_P_DBG+1}] offset:56")
        p(f"v_mov_b32 v6, s98")
        p(f"global_store_dword v2, v6, s[{S_P_DBG}:{S_P_DBG+1}] offset:60")
        p(f"s_branch {lab}")
        p.label(lab2)
        p("v_mov_b32 v2, 0")
        for i in range(min(n, 11)):
            p(f"v_mov_b32 v5, s{STAMP_BASE + 2*i}")
            p(f"global_store_dword v2, v5, s[{S_P_DBG}:{S_P_DBG+1}] offset:{4*(i+1)}")
            p("s_nop 1")
        p(f"v_mov_b32 v5, s98")
        p(f"global_store_dword v2, v5, s[{S_P_DBG}:{S_P_DBG+1}] offset:52")
        p(f"s_branch {lab}")
    p(f"s_lshl_b32 s100, s2, 6")
    p(f"s_add_u32 s100, s100, {OFF_ST}")
    p("v_mov_b32 v2, s100")
    for i in range(n):
        p(f"v_mov_b32 v5, s{STAMP_BASE + 2*i}")
        p(f"global_store_dword v2, v5, s[{S_P_WS}:{S_P_WS+1}] offset:{4*i}")
        p("s_nop 1")
    p(f"v_mov_b32 v5, s98")
    p(f"global_store_dword v2, v5, s[{S_P_WS}:{S_P_WS+1}] offset:60")
    p.label(lab)
    p("s_mov_b64 exec, -1")
    p("s_waitcnt vmcnt(0)")

def gen():
    p = K()
    prologue(p)
    n0 = p.nst
    p(f"s_cmp_eq_u32 s{S_BR}, 1")
    p("s_cbranch_scc1 L_B")
    path_A(p)
    nA = p.nst
    p("s_branch L_P2")
    p.label("L_B")
    p.vm = []; p.nst = n0
    path_B(p)
    p.nst = max(p.nst, nA)
    p.label("L_P2")
    phase2(p)
    stamp_flush(p, p.nst)
    p.label("L_END")
    p("s_endpgm")
    return p

HDR = open("gated_mix__linear_attn_block__sliding_local_dilated__prompt.s.ref").read().split("; Override launch")[0]

def main(outp):
    body, n = gen().text()
    print("hazard pads:", n, file=sys.stderr)
    s = HDR
    s += f"; @launch grid=(256,1,1) block=(512,1,1) lds={LDS_BYTES}\n"
    s += '.amdgcn_target "amdgcn-amd-amdhsa--gfx950"\n.text\n'
    s += f".globl {NAME}\n.p2align 8\n.type {NAME},@function\n{NAME}:\n{body}"
    s += '.section .rodata,"a"\n.p2align 6\n'
    s += f""".amdhsa_kernel {NAME}
  .amdhsa_next_free_vgpr 256
  .amdhsa_next_free_sgpr {102 if DEBUG_STAMPS else 72}
  .amdhsa_accum_offset 128
  .amdhsa_group_segment_fixed_size 0
  .amdhsa_kernarg_size 80
  .amdhsa_user_sgpr_count 2
  .amdhsa_user_sgpr_kernarg_segment_ptr 1
  .amdhsa_system_sgpr_workgroup_id_x 1
  .amdhsa_float_denorm_mode_32 3
.end_amdhsa_kernel
"""
    open(outp, "w").write(s)

if __name__ == "__main__":
    if "--stamps" in sys.argv: DEBUG_STAMPS = True
    if "--fine" in sys.argv: FINE = True
    if "--cyc" in sys.argv: CYC = True
    if "--dbgout" in sys.argv: DBGOUT = True
    for a in sys.argv:
        if a.startswith("--exp="): EXP = a[6:]
    main(sys.argv[1])
```
